```python
import torch

def _softmax(x, axis=-1):
    return torch.softmax(x, dim=axis)
def _gelu(x):
    return torch.nn.functional.gelu(x, approximate="tanh")
def _silu(x):
    return torch.nn.functional.silu(x)
def _sigmoid(x):
    return torch.sigmoid(x)
def _layernorm(x, axis=-1, eps=1e-5):
    m = x.mean(dim=axis, keepdim=True)
    v = x.var(dim=axis, keepdim=True, unbiased=False)
    return (x - m) / torch.sqrt(v + eps)
def _scatter_add(tgt, idx, src, axis=0):
    return tgt.clone().index_add_(axis, idx, src)
def _segment_sum(src, seg, n):
    out = torch.zeros((n,) + src.shape[1:], dtype=src.dtype)
    return out.index_add_(0, seg, src)
def _pad(x, pw):
    flat = tuple(v for pair in reversed(pw) for v in pair)
    return torch.nn.functional.pad(x, flat)

kernel_name = 'concat_heads__mha_block_cached__gqa_block_cached__near_ridge'

def setup_inputs():

    _w = (lambda a: (lambda t: t.to(torch.bfloat16) if t.is_floating_point() else t)(torch.as_tensor(a)))
    def _A_setup():
        B, Sq, D = 16, 96, 1024
        H, Sk, Dh = 32, 512, 128
        return {
            "x": _w((lambda *s: torch.randn(*s, dtype=torch.bfloat16) * 0.8)(B, Sq, D)),
            "k_cache": _w((lambda *s: torch.randn(*s, dtype=torch.bfloat16) * 0.8)(B, H, Sk, Dh)),
            "v_cache": _w((lambda *s: torch.randn(*s, dtype=torch.bfloat16) * 0.05)(B, H, Sk, Dh)),
            "wq": _w((lambda *s: torch.randn(*s, dtype=torch.bfloat16) * 0.8)(D, H * Dh) * (D ** -0.5)),
            "wo": _w((lambda *s: torch.randn(*s, dtype=torch.bfloat16) * 0.05)(H * Dh, D) * ((H * Dh) ** -0.5)),
        }
    _A_in = _A_setup()

    def _B_setup():
        B, Sq, D = 16, 96, 1024
        Hq, Hkv, Sk, Dh = 32, 32, 512, 128
        assert Hq % Hkv == 0, (Hq, Hkv)
        return {
            "x": _w((lambda *s: torch.randn(*s, dtype=torch.bfloat16) * 0.8)(B, Sq, D)),
            "k_cache": _w((lambda *s: torch.randn(*s, dtype=torch.bfloat16) * 0.8)(B, Hkv, Sk, Dh)),
            "v_cache": _w((lambda *s: torch.randn(*s, dtype=torch.bfloat16) * 0.05)(B, Hkv, Sk, Dh)),
            "wq": _w((lambda *s: torch.randn(*s, dtype=torch.bfloat16) * 0.8)(D, Hq * Dh) * (D ** -0.5)),
            "wo": _w((lambda *s: torch.randn(*s, dtype=torch.bfloat16) * 0.05)(Hq * Dh, D) * ((Hq * Dh) ** -0.5)),
        }
    _B_in = _B_setup()

    return {
        "A_x": _A_in["x"],
        "A_k_cache": _A_in["k_cache"],
        "A_v_cache": _A_in["v_cache"],
        "A_wq": _A_in["wq"],
        "A_wo": _A_in["wo"],
        "B_x": _B_in["x"],
        "B_k_cache": _B_in["k_cache"],
        "B_v_cache": _B_in["v_cache"],
        "B_wq": _B_in["wq"],
        "B_wo": _B_in["wo"],
    }

def reference(A_x, A_k_cache, A_v_cache, A_wq, A_wo, B_x, B_k_cache, B_v_cache, B_wq, B_wo):
    def _A_ref(x, k_cache, v_cache, wq, wo):
        B, Sq, D = x.shape
        H, Dh = 32, 128
        q = (lambda x, *d: x.permute(*d))((x @ wq).reshape(B, Sq, H, Dh), 0, 2, 1, 3)
        scores = torch.einsum("bhqd,bhkd->bhqk", q, k_cache) * (Dh ** -0.5)
        p = _softmax(scores, axis=-1)
        o = torch.einsum("bhqk,bhkd->bhqd", p, v_cache)
        return (lambda x, *d: x.permute(*d))(o, 0, 2, 1, 3).reshape(B, Sq, H * Dh) @ wo

    def _B_ref(x, k_cache, v_cache, wq, wo):
        B, Sq, D = x.shape
        Hq, Dh = 32, 128
        Hkv = k_cache.shape[1]
        rep = Hq // Hkv
        q = (lambda x, *d: x.permute(*d))((x @ wq).reshape(B, Sq, Hq, Dh), 0, 2, 1, 3)
        k = (lambda x, n, axis: torch.repeat_interleave(x, n, dim=axis))(k_cache, rep, axis=1)
        v = (lambda x, n, axis: torch.repeat_interleave(x, n, dim=axis))(v_cache, rep, axis=1)
        scores = torch.einsum("bhqd,bhkd->bhqk", q, k) * (Dh ** -0.5)
        p = _softmax(scores, axis=-1)
        o = torch.einsum("bhqk,bhkd->bhqd", p, v)
        return (lambda x, *d: x.permute(*d))(o, 0, 2, 1, 3).reshape(B, Sq, Hq * Dh) @ wo

    a = _A_ref(A_x, A_k_cache, A_v_cache, A_wq, A_wo)
    b = _B_ref(B_x, B_k_cache, B_v_cache, B_wq, B_wo)
    return torch.concatenate([a, b], axis=-1)
```

```python
import sys, re, math
NAME = "concat_heads__mha_block_cached__gqa_block_cached__near_ridge"

SLOT = 40960
NSLOT = 4
WS_Q = 0x0
WS_O = 0x2000000
WS_P = 0x4000000
WS_T = 0x8000000
WS_SIZE = 308281344
THR = 8.0
QSCALE = math.log2(math.e) / math.sqrt(128.0)

import struct
def f32(x): return "0x%08x" % struct.unpack("<I", struct.pack("<f", x))[0]

class Asm:
    def __init__(s): s.l = []; s.uid = 0
    def __call__(s, t):
        for x in t.split("\n"):
            x = x.strip()
            if x: s.l.append("    " + x)
    def lab(s, n): s.l.append(n + ":")
    def c(s, t): s.l.append("    ; " + t)
    def new(s, p): s.uid += 1; return f"{p}_{s.uid}"

class LQ:
    def __init__(s, a): s.a = a; s.q = []
    def rd(s, ins, tag):
        s.a(ins); s.q.append(tag); assert len(s.q) <= 15, "lgkm overflow"
    def need(s, tag):
        idx = [i for i, t in enumerate(s.q) if t == tag]
        if not idx: return
        n = len(s.q) - 1 - idx[-1]
        s.a(f"s_waitcnt lgkmcnt({n})"); s.q = s.q[idx[-1] + 1:]
    def drain(s):
        s.a("s_waitcnt lgkmcnt(0)"); s.q = []

def vr(b, n=4): return f"v[{b}:{b+n-1}]"
def mfma(d, a_, b_, c): return f"v_mfma_f32_16x16x32_bf16 {vr(d)}, {vr(a_)}, {vr(b_)}, {c if isinstance(c, str) else vr(c)}"

sWG, sWV, sP, sG, sMB, sHS, sROT, sPM = "s2", "s3", "s4", "s5", "s6", "s7", "s8", "s9"
sPROG, sSEL = "s10", "s11"
SA, SB, SK, SV, SWS, SOUT, SDBG = 28, 32, 36, 40, 44, 48, 52
def srd(b): return f"s[{b}:{b+3}]"
sSLOT, sI, sN, sT0, sT1, sT2, sCODE = "s56", "s57", "s58", "s59", "s60", "s61", "s62"
sFIRST, sKST, sMASK, sROFF, sBA, sMA, sJA, sBB, sMBm, sJB, sPOLL, sA, sB_, sM0, sK0, sK1, sTILE = \
    "s63", "s64", "s65", "s66", "s67", "s68", "s69", "s70", "s71", "s72", "s73", "s74", "s75", "s76", "s77", "s78", "s79"
sDL, sPEND, sFOFF, sFSH, sHEAD = "s63", "s64", "s65", "s66", "s67"
sSTAMP = 80

vLANE, vA0, vA1, vA2 = 0, 1, 2, 3
vT = 4
vONES = 8
vCI = 12
vL = 24
vRING = 36
vM = 52
vS = 64
vACC = 112
vQ = 208
def acc(nt, mt): return vACC + (nt * 3 + mt) * 4
def qreg(mt, ks): return vQ + (mt * 4 + ks) * 4

class Gen:
    def __init__(s, mode="fused", stamps=False, opts=None):
        s.mode = mode; s.stamps = stamps; s.a = Asm(); s.o = opts or {}
        s.nst = 0

    def stamp(s):
        if not s.stamps: return
        a = s.a
        a("s_memrealtime s[100:101]\ns_waitcnt lgkmcnt(0)")
        for i in range(sSTAMP + 15, sSTAMP, -1): a(f"s_mov_b32 s{i}, s{i-1}")
        a(f"s_mov_b32 s{sSTAMP}, s100")

    def stamp_dump(s):
        if not s.stamps: return
        a = s.a
        a(f"s_lshl_b32 {sT0}, {sWG}, 3\ns_add_u32 {sT0}, {sT0}, {sWV}\ns_lshl_b32 {sT0}, {sT0}, 6\ns_add_u32 {sT0}, {sT0}, {WS_T}")
        a(f"v_mov_b32 v{vT}, 0")
        for i in range(16):
            a(f"v_mov_b32 v{vT+1}, s{sSTAMP+i}\nbuffer_store_dword v{vT+1}, v{vT}, {srd(SWS)}, {sT0} offen offset:{4*i}\ns_nop 1")
        a("s_waitcnt vmcnt(0)")

    def setup(s, kname, progs):
        a = s.a
        a.l.append(f".globl {kname}\n.p2align 8\n.type {kname},@function\n{kname}:")
        a(f"""s_cmp_ge_u32 {sWG}, 256
        s_cbranch_scc1 {kname}_end
        s_and_b32 {sT0}, {sWG}, 7
        s_lshr_b32 {sP}, {sT0}, 2
        s_mul_i32 {sT1}, {sP}, 40
        s_add_u32 s60, s0, {sT1}
        s_addc_u32 s61, s1, 0
        s_load_dwordx8 s[12:19], s[60:61], 0
        s_load_dwordx2 s[20:21], s[60:61], 32
        s_load_dwordx2 s[22:23], s[0:1], 96
        s_load_dwordx4 s[24:27], s[0:1], 80
        v_lshrrev_b32 v1, 6, v0
        v_and_b32 v{vLANE}, 63, v0
        v_readfirstlane_b32 {sWV}, v1
        s_bfe_u32 {sG}, {sWG}, 0x10003
        s_lshr_b32 {sI}, {sWG}, 4
        s_and_b32 {sN}, {sI}, 3
        s_lshr_b32 {sI}, {sI}, 2
        s_add_u32 {sROT}, {sN}, {sI}
        s_and_b32 {sROT}, {sROT}, 3
        s_and_b32 {sMB}, {sT0}, 1
        s_lshl_b32 {sMB}, {sMB}, 2
        s_add_u32 {sMB}, {sMB}, {sN}
        s_bfe_u32 {sHS}, {sT0}, 0x10001
        s_lshl_b32 {sHS}, {sHS}, 2
        s_add_u32 {sHS}, {sHS}, {sI}
        s_lshl_b32 {sPM}, {sP}, 3
        s_add_u32 {sPM}, {sPM}, {sMB}
        s_cmp_eq_u32 {sG}, 0
        s_cselect_b32 {sPROG}, {hex(progs[0])}, {hex(progs[1])}""" if progs[0] == progs[1] else f"""s_cmp_ge_u32 {sWG}, 256
        s_cbranch_scc1 {kname}_end
        s_and_b32 {sT0}, {sWG}, 7
        s_lshr_b32 {sP}, {sT0}, 2
        s_mul_i32 {sT1}, {sP}, 40
        s_add_u32 s60, s0, {sT1}
        s_addc_u32 s61, s1, 0
        s_load_dwordx8 s[12:19], s[60:61], 0
        s_load_dwordx2 s[20:21], s[60:61], 32
        s_load_dwordx2 s[22:23], s[0:1], 96
        s_load_dwordx4 s[24:27], s[0:1], 80
        v_lshrrev_b32 v1, 6, v0
        v_and_b32 v{vLANE}, 63, v0
        v_readfirstlane_b32 {sWV}, v1
        s_bfe_u32 {sG}, {sWG}, 0x10003
        s_lshr_b32 {sI}, {sWG}, 4
        s_and_b32 {sN}, {sI}, 3
        s_lshr_b32 {sI}, {sI}, 2
        s_add_u32 {sROT}, {sN}, {sI}
        s_and_b32 {sROT}, {sROT}, 3
        s_and_b32 {sMB}, {sT0}, 1
        s_lshl_b32 {sMB}, {sMB}, 2
        s_add_u32 {sMB}, {sMB}, {sN}
        s_bfe_u32 {sHS}, {sT0}, 0x10001
        s_lshl_b32 {sHS}, {sHS}, 2
        s_add_u32 {sHS}, {sHS}, {sI}
        s_lshl_b32 {sPM}, {sP}, 3
        s_add_u32 {sPM}, {sPM}, {sMB}
        s_mov_b32 {sPROG}, {hex(progs[0])}
        s_cmp_eq_u32 {sG}, 0
        s_cselect_b32 {sPROG}, {sPROG}, {hex(progs[1])}""")
        a(f"s_mov_b32 {sSLOT}, 0\ns_waitcnt lgkmcnt(0)")
        for (b, lo, size) in [(SA, 12, 3145728), (SB, 18, 8388608), (SK, 14, 67108864), (SV, 16, 67108864),
                              (SWS, 22, WS_SIZE), (SOUT, 24, 6291456), (SDBG, 26, 256)]:
            a(f"s_mov_b32 s{b}, s{lo}\ns_mov_b32 s{b+1}, s{lo+1}\ns_mov_b32 s{b+2}, {size}\ns_mov_b32 s{b+3}, 0x20000")
        if s.stamps:
            for i in range(16): a(f"s_mov_b32 s{sSTAMP+i}, 0")
        s.stamp()
        a(f"s_cmp_ge_u32 {sWV}, 4\ns_cbranch_scc1 {kname}_loader")

    def next_slot(s, reg):
        s.a(f"s_add_u32 {reg}, {reg}, {SLOT}\ns_cmp_eq_u32 {reg}, {SLOT*NSLOT}\ns_cselect_b32 {reg}, 0, {reg}")

    def decode(s):
        s.a(f"s_and_b32 {sCODE}, {sPROG}, 7\ns_bfe_u32 {sSEL}, {sPROG}, 0x10003\ns_lshr_b32 {sPROG}, {sPROG}, 4")

    def head_of_sel(s, dst):
        s.a(f"s_lshl_b32 {dst}, {sSEL}, 1\ns_add_u32 {dst}, {dst}, {sG}\ns_lshl_b32 {dst}, {dst}, 3\ns_add_u32 {dst}, {dst}, {sHS}")

    def poll(s, off_reg, mask_reg, vtmp, vzero):
        a = s.a; L = a.new("L_poll"); D = a.new("L_polld")
        a(f"s_mov_b32 {sT2}, 0x40000")
        a.lab(L)
        a(f"""buffer_load_dword v{vtmp}, v{vzero}, {srd(SDBG)}, {off_reg} offen sc1
        s_waitcnt vmcnt(0)
        v_readfirstlane_b32 {sT0}, v{vtmp}
        s_and_b32 {sT0}, {sT0}, {mask_reg}
        s_cmp_eq_u32 {sT0}, {mask_reg}
        s_cbranch_scc1 {D}
        s_sleep 4
        s_sub_u32 {sT2}, {sT2}, 1
        s_cmp_lg_u32 {sT2}, 0
        s_cbranch_scc1 {L}""")
        a.lab(D)

    def unit_end(s, n):
        a = s.a; L = a.new("L_ue")
        s.next_slot(sSLOT)
        a(f"s_cmp_eq_u32 {sFIRST}, 0\ns_mov_b32 {sFIRST}, 0\ns_cbranch_scc0 {L}\ns_waitcnt vmcnt({n})\ns_barrier")
        a.lab(L)

    def loader_gemm_loop(s, kname, tail, polls):
        a = s.a; L = a.new("L_lg")
        vRA, vRB = 10, 11
        a(f"s_mov_b32 {sI}, 0")
        a.lab(L)
        if polls:
            S = a.new("L_nop")
            a(f"s_and_b32 {sT0}, {sI}, 7\ns_or_b32 {sT0}, {sT0}, {sPOLL}\ns_cmp_lg_u32 {sT0}, 0\ns_cbranch_scc1 {S}")
            a(f"""s_add_u32 {sT0}, {sKST}, {sI}
            s_lshr_b32 {sT0}, {sT0}, 3
            s_lshr_b32 {sT1}, {sT0}, 2
            s_lshl_b32 {sB_}, 0x01010101, {sT1}
            s_and_b32 {sT0}, {sT0}, 3
            s_lshl_b32 {sA}, {sPM}, 2
            s_add_u32 {sA}, {sA}, {sT0}
            s_lshl_b32 {sA}, {sA}, 2""")
            s.poll(sA, sB_, 14, 15)
            a.lab(S)
        a(f"""s_add_u32 {sT0}, {sI}, {sROFF}
        s_and_b32 {sT0}, {sT0}, {sMASK}
        s_andn2_b32 {sT1}, {sI}, {sMASK}
        s_add_u32 {sT0}, {sT0}, {sT1}
        s_add_u32 {sT0}, {sT0}, {sKST}
        s_mul_i32 {sA}, {sT0}, {sMA}
        s_add_u32 {sA}, {sA}, {sBA}
        s_mul_i32 {sB_}, {sT0}, {sMBm}
        s_add_u32 {sB_}, {sB_}, {sBB}
        s_lshl_b32 {sT1}, {sWV}, 10
        s_add_u32 {sM0}, {sSLOT}, {sT1}""")
        fa = s.o.get("fa", "sc1"); fb = s.o.get("fb", "")
        for j in range(6):
            a(f"s_add_u32 m0, {sM0}, {j*4096}")
            if j: a(f"s_add_u32 {sA}, {sA}, {sJA}")
            else: a("s_nop 0")
            a(f"buffer_load_dwordx4 v{vRA}, {srd(SA)}, {sA} offen {fa} lds")
        if tail:
            for oo in range(2):
                a(f"s_add_u32 m0, {sM0}, {24576 + oo*4096}")
                if oo: a(f"s_add_u32 {sB_}, {sB_}, {sJB}")
                else: a("s_nop 0")
                a(f"buffer_load_dwordx4 v{vRB}, {srd(SB)}, {sB_} offen {fb} lds")
            n = 8
        else:
            a(f"s_add_u32 {sM0}, {sM0}, {sT1}")
            for oo in range(2):
                for hf in range(2):
                    a(f"s_add_u32 m0, {sM0}, {24576 + oo*8192 + hf*(1024-128)}")
                    if oo and not hf: a(f"s_add_u32 {sB_}, {sB_}, {sJB}")
                    else: a("s_nop 0")
                    a(f"buffer_load_dwordx4 v{vRB}, {srd(SB)}, {sB_} offen offset:{hf*128} {fb} lds")
            n = 10
        s.unit_end(n)
        a(f"s_add_u32 {sI}, {sI}, 1\ns_cmp_lt_u32 {sI}, {sN}\ns_cbranch_scc1 {L}")

    def loader_o_params(s, kst, n, tail):
        a = s.a
        a(f"""s_mov_b32 s{SA}, s22
        s_mov_b32 s{SA+1}, s23
        s_mov_b32 s{SA+2}, {WS_SIZE}
        s_mov_b32 s{SB}, s20
        s_mov_b32 s{SB+1}, s21
        v_mov_b32 v10, v8
        v_mov_b32 v11, v9
        s_mul_i32 {sBA}, {sPM}, {32*49152}
        s_add_u32 {sBA}, {sBA}, {WS_O}
        s_mov_b32 {sMA}, 24576
        s_mov_b32 {sJA}, 4096
        s_lshl_b32 {sBB}, {sHS}, 8
        s_mov_b32 {sMBm}, {64*2048}
        s_mov_b32 {sJB}, {32*2048}
        s_mov_b32 {sMASK}, 7
        s_lshl_b32 {sROFF}, {sROT}, 1
        s_mov_b32 {sN}, {n}
        s_mov_b32 {sPOLL}, 0""")
        if isinstance(kst, int): a(f"s_mov_b32 {sKST}, {kst}")
        else: a(kst)
        if tail: a(f"s_lshl_b32 {sT0}, {sG}, 7\ns_add_u32 {sBB}, {sBB}, {sT0}")

    def loader(s, kname, has_main, tailcfg):
        a = s.a
        a.lab(f"{kname}_loader")
        a(f"s_sub_u32 {sWV}, {sWV}, 4\ns_mov_b32 {sFIRST}, 1")
        a(f"""v_lshrrev_b32 v1, 5, v0
        v_lshlrev_b32 v1, 6, v1
        v_bfe_u32 v2, v0, 2, 3
        v_and_b32 v3, 3, v0
        s_lshl_b32 {sT0}, {sWV}, 3
        v_add_u32 v4, {sT0}, v2
        v_mov_b32 v15, 0""")
        a(f"""v_lshrrev_b32 v5, 2, v4
        v_sub_u32 v5, 0, v5
        v_and_b32 v5, 3, v5
        v_xor_b32 v5, v5, v3
        v_lshlrev_b32 v5, 4, v5
        v_lshlrev_b32 v6, 11, v4
        v_add3_u32 v6, v6, v5, v1""")
        a(f"""s_and_b32 {sT0}, {sWV}, 1
        s_lshl_b32 {sT1}, {sT0}, 1
        v_xor_b32 v5, {sT1}, v3
        v_lshlrev_b32 v5, 4, v5
        v_add_u32 v5, v5, v1
        v_lshl_add_u32 v7, v4, 13, v5
        v_lshl_add_u32 v9, v4, 11, v5
        s_lshl_b32 {sT1}, {sWV}, 10
        v_lshlrev_b32 v8, 4, v0
        v_add_u32 v8, {sT1}, v8""")
        a(f"""v_xor_b32 v5, {sT0}, v3
        v_lshlrev_b32 v5, 4, v5
        v_add_u32 v5, v5, v1
        v_lshl_add_u32 v12, v4, 8, v5
        v_lshrrev_b32 v5, 2, v2
        v_lshlrev_b32 v5, 1, v5
        v_xor_b32 v5, v5, v3
        v_lshlrev_b32 v5, 4, v5
        v_add_u32 v5, v5, v1
        v_lshl_add_u32 v13, v4, 8, v5
        v_mov_b32 v10, v6
        v_mov_b32 v11, v7""")
        LN = f"{kname}_lnext"; LG = f"{kname}_lgemm"; LA = f"{kname}_latt"; LO = f"{kname}_lomid"; LT = f"{kname}_ltail"; LE = f"{kname}_lend"
        a.lab(LN)
        s.decode()
        if tailcfg is not None:
            a(f"s_cmp_eq_u32 {sCODE}, 6\ns_cbranch_scc1 {LT}")
        if has_main:
            a(f"s_cmp_eq_u32 {sCODE}, 0\ns_cbranch_scc1 {LE}")
            if s.mode == "fused": a(f"s_cmp_eq_u32 {sCODE}, 5\ns_cbranch_scc1 {LO}")
            a(f"s_cmp_ge_u32 {sCODE}, 3\ns_cbranch_scc1 {LA}")
            s.head_of_sel(sT0)
            a(f"""s_mul_i32 {sBA}, {sMB}, {192*2048}
            s_mov_b32 {sMA}, 128
            s_mov_b32 {sJA}, 65536
            s_lshl_b32 {sBB}, {sT0}, 8
            s_mov_b32 {sMBm}, {64*8192}
            s_mov_b32 {sJB}, {32*8192}
            s_mov_b32 {sMASK}, 15
            s_lshl_b32 {sROFF}, {sROT}, 2
            s_lshl_b32 {sT0}, {sG}, 1
            s_add_u32 {sROFF}, {sROFF}, {sT0}
            s_mov_b32 {sKST}, 0
            s_mov_b32 {sN}, 16
            s_mov_b32 {sPOLL}, 1""")
            a.lab(LG)
            s.loader_gemm_loop(kname, False, s.mode == "fused")
            a(f"s_branch {LN}")
            if s.mode == "fused":
                a.lab(LO)
                s.loader_o_params(f"s_sub_u32 {sT0}, 1, {sG}\ns_mul_i32 {sKST}, {sT0}, 24", 24, False)
                a(f"s_branch {LG}")
            a.lab(LA)
            s.head_of_sel(sT0)
            a(f"""s_lshl_b32 {sT1}, {sMB}, 6
            s_add_u32 {sT0}, {sT0}, {sT1}
            s_lshl_b32 {sK0}, {sT0}, 17
            s_lshr_b32 {sTILE}, {sWG}, 4
            s_lshl_b32 {sTILE}, {sTILE}, 13
            s_mov_b32 {sI}, 0""")
            if not s.o.get("krot", True): a(f"s_mov_b32 {sTILE}, 0")
            fk = s.o.get("fk", "nt")
            def kv(sr, vo, base):
                a(f"s_add_u32 {sA}, {sK0}, {sTILE}\ns_add_u32 {sB_}, {sA}, {4194304}")
                for it in range(2):
                    for hf in range(2):
                        a(f"s_add_u32 m0, {sM0}, {base + it*8192 + hf*(1024-128)}\ns_nop 0")
                        a(f"buffer_load_dwordx4 v{vo}, {srd(sr)}, {sA if it == 0 else sB_} offen offset:{hf*128} {fk} lds")
            def m0base(): a(f"s_lshl_b32 {sT1}, {sWV}, 11\ns_add_u32 {sM0}, {sSLOT}, {sT1}")
            m0base(); kv(SK, 12, 0); s.unit_end(4)
            L = a.new("L_la"); a.lab(L)
            m0base()
            a(f"s_mov_b32 {sK1}, {sTILE}\ns_add_u32 {sTILE}, {sTILE}, 8192\ns_and_b32 {sTILE}, {sTILE}, 0x1ffff")
            kv(SK, 12, 0)
            a(f"s_mov_b32 {sT0}, {sTILE}\ns_mov_b32 {sTILE}, {sK1}")
            a(f"s_mov_b32 {sK1}, {sT0}")
            kv(SV, 13, 16384)
            a(f"s_mov_b32 {sTILE}, {sK1}")
            s.unit_end(8)
            a(f"s_add_u32 {sI}, {sI}, 1\ns_cmp_lt_u32 {sI}, 15\ns_cbranch_scc1 {L}")
            m0base(); kv(SV, 13, 16384); s.unit_end(4)
            a(f"s_branch {LN}")
        if tailcfg is not None:
            a.lab(LT)
            if tailcfg["sync"]:
                a(f"s_waitcnt vmcnt(0)\ns_barrier\ns_barrier\ns_mov_b32 {sFIRST}, 1")
            s.loader_o_params(tailcfg["kst"], tailcfg["n"], True)
            s.loader_gemm_loop(kname, True, tailcfg["sync"])
        a.lab(LE)
        a("s_waitcnt vmcnt(0)\ns_barrier")
        s.stamp()
        if s.stamps: a(f"s_add_u32 {sWV}, {sWV}, 4")
        s.stamp_dump()
        a("s_endpgm")

    def adv_addr(s):
        a = s.a
        a(f"s_mov_b32 {sDL}, {sSLOT}")
        s.next_slot(sSLOT)
        a(f"s_sub_u32 {sDL}, {sSLOT}, {sDL}")
    def adv_apply(s):
        for r in (vA0, vA1, vA2): s.a(f"v_add_u32 v{r}, {sDL}, v{r}")

    def pack_acc(s, nts, scale, dst):
        a = s.a
        for mt in range(3):
            for pr in range(nts // 2):
                d = dst(mt, pr); x = acc(2 * pr, mt); y = acc(2 * pr + 1, mt)
                if scale is not None:
                    for r in range(4): a(f"v_mul_f32 v{x+r}, {scale(mt)}, v{x+r}")
                    for r in range(4): a(f"v_mul_f32 v{y+r}, {scale(mt)}, v{y+r}")
                a(f"v_cvt_pk_bf16_f32 v{d}, v{x}, v{x+1}\nv_cvt_pk_bf16_f32 v{d+2}, v{y}, v{y+1}")
                a(f"v_cvt_pk_bf16_f32 v{d+1}, v{x+2}, v{x+3}\nv_cvt_pk_bf16_f32 v{d+3}, v{y+2}, v{y+3}")
                a(f"s_nop 0\nv_permlane16_swap_b32 v{d}, v{d+2}\nv_permlane16_swap_b32 v{d+1}, v{d+3}")

    def signal(s):
        a = s.a; L = a.new("L_sig")
        a(f"""s_cmp_lg_u32 {sWV}, 0
        s_cbranch_scc1 {L}
        s_cmp_eq_u32 {sPEND}, 0
        s_cbranch_scc1 {L}
        s_lshl_b32 {sT0}, {sPEND}, {sFSH}
        v_mov_b32 v{vT}, {sT0}
        v_mov_b32 v{vT+1}, 0
        s_mov_b64 exec, 1
        buffer_atomic_add v{vT}, v{vT+1}, {srd(SDBG)}, {sFOFF} offen sc1
        s_mov_b64 exec, -1""")
        a.lab(L)
        a(f"s_mov_b32 {sPEND}, 0")

    def gemm_addr(s, tail):
        a = s.a
        a(f"""v_bfe_u32 v{vT}, v0, 3, 1
        s_mul_i32 {sT0}, {sWV}, 6
        v_add_u32 v{vT}, {sT0}, v{vT}
        v_lshlrev_b32 v{vT}, 10, v{vT}
        v_and_b32 v{vT+1}, 7, v0
        v_lshl_add_u32 v{vT}, v{vT+1}, 6, v{vT}
        v_lshrrev_b32 v{vT+1}, 2, v0
        v_sub_u32 v{vT+1}, 0, v{vT+1}
        v_and_b32 v{vT+1}, 3, v{vT+1}
        v_lshrrev_b32 v{vT+2}, 4, v0
        v_xor_b32 v{vT+1}, v{vT+1}, v{vT+2}
        v_lshl_add_u32 v{vT}, v{vT+1}, 4, v{vT}
        v_add_u32 v{vA0}, {sSLOT}, v{vT}""")
        sh = 10 if tail else 11
        a(f"""v_lshlrev_b32 v{vT}, {sh}, v{vT+2}
        v_bfe_u32 v{vT+1}, v0, 2, 2
        v_lshl_add_u32 v{vT}, v{vT+1}, 6, v{vT}
        v_and_b32 v{vT+1}, 1, v{vT+2}
        v_lshl_add_u32 v{vT}, v{vT+1}, 5, v{vT}
        v_and_b32 v{vT+1}, 3, v0
        v_lshl_add_u32 v{vT}, v{vT+1}, 3, v{vT}
        v_add_u32 v{vT}, 24576, v{vT}
        v_xor_b32 v{vT+1}, 32, v{vT}
        v_add_u32 v{vA1}, {sSLOT}, v{vT}
        v_add_u32 v{vA2}, {sSLOT}, v{vT+1}""")

    def gemm_loop(s, tail, hook):
        a = s.a; q = LQ(a)
        NT = 4 if tail else 8
        R = 8; LA = s.o.get("gla", 5) if not tail else 4
        vX = vS; vW = vS + 24
        wreg = [88, 92, 96, 100, 104, 108, 36, 40]
        NF = 2 * NT
        kso = 4096 if tail else 8192
        def rdW(f):
            ks, nt = (f % NF) // NT, f % NT
            r = wreg[f % R]; ad = vA1 if nt % 2 == 0 else vA2
            for sec in range(2):
                q.rd(f"ds_read_b64_tr_b16 {vr(r + 2*sec, 2)}, v{ad} offset:{ks*kso + (nt>>1)*512 + sec*256}", ("W", f % NF))
        def rdX(ks, mt):
            q.rd(f"ds_read_b128 {vr(vX + ks*12 + mt*4)}, v{vA0} offset:{mt*2048 + ks*512}", ("X", ks, mt))
        def grp(f, reads):
            ks, nt = f // NT, f % NT
            q.need(("W", f))
            for mt in range(3):
                q.need(("X", ks, mt))
                a(mfma(acc(nt, mt), wreg[f % R], vX + ks*12 + mt*4, acc(nt, mt)))
                if mt < len(reads): reads[mt]()
            for r in reads[3:]: r()
        a("s_barrier")
        s.stamp()
        for mt in range(3): rdX(0, mt)
        for f in range(LA): rdW(f)
        a(f"s_mov_b32 {sI}, 1")
        q0 = list(q.q)
        L = a.new("L_gl"); F = a.new("L_gf"); B = a.new("L_gb"); H = a.new("L_gh")
        a.lab(L)
        cut = NF - LA
        for f in range(cut):
            reads = [lambda f=f: rdW(f + LA)]
            if f < 3: reads.append(lambda f=f: rdX(1, f))
            if f == cut - 1: reads.append(lambda: s.adv_addr())
            grp(f, reads)
        qcut = list(q.q)
        a(f"s_cmp_eq_u32 {sI}, {sN}\ns_cbranch_scc1 {F}")
        if hook: a(f"s_cmp_eq_u32 {sI}, {hook[0]}\ns_cbranch_scc1 {H}")
        a("s_barrier")
        a.lab(B)
        s.adv_apply()
        a(f"s_add_u32 {sI}, {sI}, 1")
        for f in range(cut, NF):
            reads = []
            if f == cut: reads = [lambda: rdX(0, 0), lambda: rdX(0, 1), lambda: rdX(0, 2)]
            reads.append(lambda f=f: rdW(f + LA))
            grp(f, reads)
        assert q.q == q0, (q.q, q0)
        a(f"s_branch {L}")
        if hook:
            a.lab(H); hook[1](); a(f"s_branch {B}")
        a.lab(F)
        q.q = qcut
        for f in range(cut, NF): grp(f, [])
        a("s_nop 7")
        s.stamp()

    def att(s):
        a = s.a; q = LQ(a)
        def S(par, qt, kt=0): return vS + par * 24 + qt * 8 + kt * 4
        ring = lambda f: vRING + (f % 4) * 4
        def rd(f):
            f %= 16
            if f < 8:
                q.rd(f"ds_read_b128 {vr(ring(f))}, v{vA0} offset:{(f >> 2)*4096 + (f & 3)*512}", f)
            else:
                dt = f - 8; ad = vA1 if dt % 2 == 0 else vA2
                for sec in range(2):
                    q.rd(f"ds_read_b64_tr_b16 {vr(ring(f) + 2*sec, 2)}, v{ad} offset:{sec*4096 + (dt >> 1)*512}", f)
        a(f"""v_lshrrev_b32 v{vT+2}, 4, v0
        s_lshr_b32 {sT0}, {sWV}, 1
        s_lshl_b32 {sT0}, {sT0}, 13
        s_add_u32 {sT0}, {sT0}, {sSLOT}
        v_bfe_u32 v{vT}, v0, 3, 1
        v_lshrrev_b32 v{vT+1}, 1, v{vT+2}
        v_and_b32 v{vT+3}, 1, v{vT+2}
        v_lshl_or_b32 v{vM}, v{vT+3}, 1, v{vT+1}
        v_xor_b32 v{vM}, v{vM}, v{vT}
        v_lshlrev_b32 v{vM}, 4, v{vM}
        v_lshl_add_u32 v{vM}, v{vT}, 11, v{vM}
        v_and_b32 v{vT}, 7, v0
        v_lshl_add_u32 v{vM}, v{vT}, 6, v{vM}
        v_add_u32 v{vA0}, {sT0}, v{vM}
        v_lshlrev_b32 v{vM}, 11, v{vT+1}
        v_bfe_u32 v{vT}, v0, 2, 3
        v_lshl_add_u32 v{vM}, v{vT}, 6, v{vM}
        v_lshl_add_u32 v{vM}, v{vT+3}, 5, v{vM}
        v_and_b32 v{vT}, 3, v0
        v_lshl_add_u32 v{vM}, v{vT}, 3, v{vM}
        v_add_u32 v{vM}, 16384, v{vM}
        v_xor_b32 v{vT}, 32, v{vM}
        v_add_u32 v{vA1}, {sT0}, v{vM}
        v_add_u32 v{vA2}, {sT0}, v{vT}""")
        for r in range(4): a(f"v_mov_b32 v{vONES+r}, 0x3f803f80")
        for r in range(12): a(f"v_mov_b32 v{vL+r}, 0")
        for r in range(96): a(f"v_mov_b32 v{vACC+r}, 0")
        a("s_waitcnt vmcnt(0)" if True else "")
        a("s_barrier")
        s.stamp()
        def qk(par, f, c0, fill):
            kt, ks = f >> 2, f & 3
            q.need(f)
            for qt in range(3):
                d = S(par, qt, kt)
                a(mfma(d, ring(f), qreg(qt, ks), (c0(qt) if ks == 0 else d)))
                for x in fill[qt]: x()
        def rowmax(par, qt, dst, tmp):
            b = S(par, qt)
            a(f"v_max3_f32 v{dst}, v{b}, v{b+1}, v{b+2}\nv_max3_f32 v{dst}, v{dst}, v{b+3}, v{b+4}\nv_max3_f32 v{dst}, v{dst}, v{b+5}, v{b+6}\nv_max_f32 v{dst}, v{dst}, v{b+7}")
            a(f"v_mov_b32 v{tmp}, v{dst}\ns_nop 1\nv_permlane16_swap_b32 v{dst}, v{tmp}\ns_nop 1\nv_max_f32 v{dst}, v{dst}, v{tmp}")
            a(f"v_mov_b32 v{tmp}, v{dst}\ns_nop 1\nv_permlane32_swap_b32 v{dst}, v{tmp}\ns_nop 1\nv_max_f32 v{dst}, v{dst}, v{tmp}")
        for f in range(3): rd(f)
        for f in range(8):
            qk(0, f, lambda qt: "0", [[lambda f=f: rd(f + 3)] if f + 3 < 8 else [], [], []])
        s.adv_addr()
        a("s_barrier")
        s.adv_apply()
        for f in range(3): rd(f)
        a("s_nop 1")
        for qt in range(3):
            rowmax(0, qt, vM + qt, vM + 4)
            for r in range(8): a(f"v_sub_f32 v{S(0,qt)+r}, v{S(0,qt)+r}, v{vM+qt}")
            for r in range(4): a(f"v_sub_f32 v{vCI+qt*4+r}, 0, v{vM+qt}")
        a(f"s_mov_b32 {sI}, 0")
        q0 = list(q.q)
        def ex(par, i): return lambda: a(f"v_exp_f32 v{vS+par*24+i}, v{vS+par*24+i}")
        def cv(par, pr):
            qt, k = pr // 4, pr % 4; b = S(par, qt)
            return lambda: a(f"v_cvt_pk_bf16_f32 v{b+k}, v{b+2*k}, v{b+2*k+1}")
        def pv(par, f, fill):
            dt = f - 8
            q.need(f)
            for qt in range(3):
                a(mfma(acc(dt, qt), ring(f), S(par, qt), acc(dt, qt)))
                for x in fill[qt]: x()
        def ones(par, qt): a(mfma(vL + qt*4, vONES, S(par, qt), vL + qt*4))
        rare = []
        def step(par):
            nx = par ^ 1
            for f in range(8):
                fill = []
                for qt in range(3):
                    i = f * 3 + qt; x = []
                    if qt == 0: x.append(lambda f=f: rd(f + 3))
                    x.append(ex(par, i))
                    if i >= 2 and i % 2 == 0: x.append(cv(par, i // 2 - 1))
                    fill.append(x)
                qk(nx, f, lambda qt: vCI + qt*4, fill)
            ones(par, 0); cv(par, 11)(); ones(par, 1); a("s_nop 0"); ones(par, 2)
            regs = [S(nx, qt, kt) + r for kt in range(2) for qt in range(3) for r in range(4)]
            mx = []
            m0_, m1_ = vM, vM + 1
            mx.append(f"v_max3_f32 v{m0_}, v{regs[0]}, v{regs[1]}, v{regs[2]}")
            mx.append(f"v_max3_f32 v{m1_}, v{regs[3]}, v{regs[4]}, v{regs[5]}")
            rest = regs[6:]
            for i in range(0, len(rest), 2):
                m = m0_ if (i // 2) % 2 == 0 else m1_
                mx.append(f"v_max3_f32 v{m}, v{m}, v{rest[i]}, v{rest[i+1]}")
            mx.append(f"v_max_f32 v{m0_}, v{m0_}, v{m1_}")
            mx.append(f"v_cmp_lt_f32 vcc, {f32(THR)}, v{m0_}")
            mi = iter(mx)
            def nm():
                x = next(mi, None)
                if x: a(x)
            for f in range(8, 16):
                fill = [[], [], []]
                if f == 13:
                    a("s_barrier"); s.adv_apply()
                fill[0].append(lambda f=f: rd(f + 3))
                if f == 12: fill[1].append(lambda: s.adv_addr())
                if f >= 9:
                    fill[1].append(nm); fill[2].append(nm)
                pv(par, f, fill)
            assert next(mi, None) is None
            R_ = a.new("L_rare"); Bk = a.new("L_back")
            a(f"s_cbranch_vccnz {R_}")
            a.lab(Bk)
            rare.append((R_, Bk, nx))
        L = a.new("L_al"); F = a.new("L_af")
        a.lab(L)
        step(0)
        assert q.q == q0
        a(f"s_cmp_eq_u32 {sI}, 7\ns_cbranch_scc1 {F}")
        step(1)
        assert q.q == q0
        a(f"s_add_u32 {sI}, {sI}, 1\ns_branch {L}")
        for (R_, Bk, nx) in rare:
            a.lab(R_)
            a("s_nop 7")
            for qt in range(3):
                rowmax(nx, qt, vM + qt, vM + 4)
                a(f"v_max_f32 v{vM+qt}, 0, v{vM+qt}\nv_sub_f32 v{vM+5}, 0, v{vM+qt}\nv_exp_f32 v{vM+5}, v{vM+5}")
                for r in range(8): a(f"v_sub_f32 v{S(nx,qt)+r}, v{S(nx,qt)+r}, v{vM+qt}")
                for r in range(4): a(f"v_sub_f32 v{vCI+qt*4+r}, v{vCI+qt*4+r}, v{vM+qt}")
                for r in range(4): a(f"v_mul_f32 v{vL+qt*4+r}, v{vL+qt*4+r}, v{vM+5}")
                for dt in range(8):
                    for r in range(4): a(f"v_mul_f32 v{acc(dt,qt)+r}, v{acc(dt,qt)+r}, v{vM+5}")
            a(f"s_nop 1\ns_branch {Bk}")
        a.lab(F)
        for f in range(8, 11): rd(f)
        for i in range(24):
            ex(1, i)()
            if i >= 2 and i % 2 == 0: cv(1, i // 2 - 1)()
        ones(1, 0); cv(1, 11)(); ones(1, 1); a("s_nop 0"); ones(1, 2)
        for f in range(8, 16):
            pv(1, f, [[lambda f=f: rd(f + 3)] if f + 3 < 16 else [], [], []])
        s.next_slot(sSLOT)
        s.stamp()
        for qt in range(3): a(f"v_rcp_f32 v{vM+qt}, v{vL+qt*4}")
        a(f"""v_bfe_u32 v{vT}, v0, 3, 1
        s_mul_i32 {sT0}, {sWV}, 6
        v_add_u32 v{vT}, {sT0}, v{vT}
        v_lshlrev_b32 v{vT}, 10, v{vT}
        v_and_b32 v{vT+1}, 7, v0
        v_lshl_add_u32 v{vT}, v{vT+1}, 6, v{vT}
        v_lshrrev_b32 v{vT+1}, 2, v0
        v_sub_u32 v{vT+1}, 0, v{vT+1}
        v_and_b32 v{vT+1}, 3, v{vT+1}
        v_lshrrev_b32 v{vT+2}, 5, v0
        v_bfe_u32 v{vT+3}, v0, 4, 1
        v_lshl_or_b32 v{vT+2}, v{vT+3}, 1, v{vT+2}
        v_xor_b32 v{vT+1}, v{vT+1}, v{vT+2}
        v_lshl_add_u32 v{vT}, v{vT+1}, 4, v{vT}
        v_add_u32 v{vT+1}, 4096, v{vT}""")
        s.head_of_sel(sT0)
        a(f"""s_lshl_b32 {sT1}, {sPM}, 5
        s_add_u32 {sT0}, {sT0}, {sT1}
        s_mul_i32 {sT0}, {sT0}, 49152
        s_add_u32 {sT0}, {sT0}, {WS_O}
        s_add_u32 {sT1}, {sT0}, 24576""")
        s.pack_acc(8, lambda mt: f"v{vM+mt}", qreg)
        for mt in range(3):
            for ks in range(4):
                a(f"buffer_store_dwordx4 {vr(qreg(mt, ks))}, v{vT + (1 if mt == 2 else 0)}, {srd(SWS)}, {sT0 if ks < 2 else sT1} offen offset:{(mt & 1)*2048 + (ks & 1)*512} sc1")
        a(f"s_lshl_b32 {sT0}, 1, {sSEL}\ns_or_b32 {sPEND}, {sPEND}, {sT0}")

    def wsq_addr(s):
        s.a(f"""s_mul_i32 {sT0}, {sWG}, 49152
        s_mul_i32 {sT1}, {sWV}, 12288
        s_add_u32 {sT0}, {sT0}, {sT1}
        v_lshlrev_b32 v{vT}, 4, v0""")

    def compute(s, kname, has_main, tailcfg):
        a = s.a
        CN = f"{kname}_cnext"; CA = f"{kname}_catt"; CT = f"{kname}_ctail"; CE = f"{kname}_cend"
        a(f"""s_lshl_b32 {sFOFF}, {sPM}, 1
        s_add_u32 {sFOFF}, {sFOFF}, {sG}
        s_lshl_b32 {sFOFF}, {sFOFF}, 1
        s_lshr_b32 {sT0}, {sHS}, 2
        s_add_u32 {sFOFF}, {sFOFF}, {sT0}
        s_lshl_b32 {sFOFF}, {sFOFF}, 2
        s_and_b32 {sFSH}, {sHS}, 3
        s_lshl_b32 {sFSH}, {sFSH}, 3
        s_mov_b32 {sPEND}, 0""")
        a.lab(CN)
        s.decode()
        if tailcfg is not None: a(f"s_cmp_eq_u32 {sCODE}, 6\ns_cbranch_scc1 {CT}")
        if has_main:
            a(f"s_cmp_eq_u32 {sCODE}, 0\ns_cbranch_scc1 {CE}")
            a(f"s_cmp_eq_u32 {sCODE}, 3\ns_cbranch_scc1 {CA}")
            G = a.new("L_cg")
            a(f"s_cmp_lg_u32 {sCODE}, 4\ns_cbranch_scc1 {G}")
            s.wsq_addr()
            a("s_waitcnt vmcnt(0)")
            for i in range(12):
                if i % 4 == 0 and i: a(f"s_add_u32 {sT0}, {sT0}, 4096")
                a(f"buffer_load_dwordx4 {vr(vQ + 4*i)}, v{vT}, {srd(SWS)}, {sT0} offen offset:{(i % 4)*1024} sc1")
            a(f"s_branch {CA}")
            a.lab(G)
            a(f"s_cmp_eq_u32 {sCODE}, 5\ns_cselect_b32 {sN}, 24, 16")
            s.gemm_addr(False)
            for r in range(96): a(f"v_mov_b32 v{vACC+r}, 0")
            def hk():
                a("s_waitcnt vmcnt(0)\ns_barrier"); s.signal()
            s.gemm_loop(False, (4, hk) if s.mode == "fused" else None)
            if s.mode == "fused":
                O5 = a.new("L_o5")
                a(f"s_cmp_eq_u32 {sCODE}, 5\ns_cbranch_scc1 {O5}")
            a(f"s_mov_b32 {sT2}, {f32(QSCALE)}")
            s.pack_acc(8, lambda mt: sT2, qreg)
            a(f"s_cmp_eq_u32 {sCODE}, 1\ns_cbranch_scc1 {CN}")
            s.wsq_addr()
            for i in range(12):
                if i % 4 == 0 and i: a(f"s_add_u32 {sT0}, {sT0}, 4096")
                a(f"buffer_store_dwordx4 {vr(vQ + 4*i)}, v{vT}, {srd(SWS)}, {sT0} offen offset:{(i % 4)*1024}")
            a(f"s_branch {CN}")
            if s.mode == "fused":
                a.lab(O5)
                a(f"""s_mul_i32 {sT0}, {sWG}, 98304
                s_mul_i32 {sT1}, {sWV}, 12288
                s_add_u32 {sT0}, {sT0}, {sT1}
                s_add_u32 {sT0}, {sT0}, {WS_P}
                v_lshlrev_b32 v{vT}, 4, v0""")
                for i in range(24):
                    if i == 12: a(f"s_add_u32 {sT0}, {sT0}, {49152 - 8192}")
                    elif i % 4 == 0 and i: a(f"s_add_u32 {sT0}, {sT0}, 4096")
                    a(f"buffer_store_dwordx4 {vr(vACC + 4*i)}, v{vT}, {srd(SWS)}, {sT0} offen offset:{(i % 4)*1024} sc1")
                a(f"s_or_b32 {sPEND}, {sPEND}, 4\ns_nop 0")
                a(f"s_branch {CN}")
            a.lab(CA)
            s.att()
            a(f"s_branch {CN}")
        if tailcfg is not None:
            a.lab(CT)
            if tailcfg["sync"]:
                a("s_waitcnt vmcnt(0)\ns_barrier"); s.signal()
                s.stamp()
            a(f"s_mov_b32 {sN}, {tailcfg['n']}")
            s.gemm_addr(True)
            for r in range(48): a(f"v_mov_b32 v{vACC+r}, 0")
            vP = vACC + 48
            def hk():
                a("s_barrier")
                a(f"s_xor_b32 {sFOFF}, {sFOFF}, 8\ns_lshl_b32 {sPEND}, 4, {sFSH}\nv_mov_b32 v{vT+1}, 0")
                s.poll(sFOFF, sPEND, vT, vT + 1)
                a(f"""s_and_b32 {sT0}, {sWG}, 0xf7
                s_mul_i32 {sT0}, {sT0}, 98304
                s_mul_i32 {sT1}, {sWV}, 12288
                s_add_u32 {sT0}, {sT0}, {sT1}
                s_mul_i32 {sT1}, {sG}, 49152
                s_add_u32 {sT0}, {sT0}, {sT1}
                s_add_u32 {sT0}, {sT0}, {WS_P}
                v_lshlrev_b32 v{vT}, 4, v0""")
                for i in range(24):
                    if i == 12: a(f"s_add_u32 {sT0}, {sT0}, {8*98304 - 8192}")
                    elif i % 4 == 0 and i: a(f"s_add_u32 {sT0}, {sT0}, 4096")
                    a(f"buffer_load_dwordx4 {vr(vP + 4*i)}, v{vT}, {srd(SWS)}, {sT0} offen offset:{(i % 4)*1024} sc1")
            s.gemm_loop(True, (tailcfg["n"] - 4, hk) if tailcfg["sync"] else None)
            if tailcfg["sync"]:
                a("s_waitcnt vmcnt(0)")
                for r in range(48): a(f"v_add_f32 v{vACC+r}, v{vACC+r}, v{vP+r}")
                for r in range(48): a(f"v_add_f32 v{vACC+r}, v{vACC+r}, v{vP+48+r}")
            dst = lambda mt, pr: vS + (mt * 2 + pr) * 4
            s.pack_acc(4, None, dst)
            a(f"""v_and_b32 v{vT}, 15, v0
            v_lshlrev_b32 v{vT}, 12, v{vT}
            v_lshrrev_b32 v{vT+2}, 5, v0
            v_bfe_u32 v{vT+3}, v0, 4, 1
            v_lshl_or_b32 v{vT+2}, v{vT+3}, 1, v{vT+2}
            v_lshl_add_u32 v{vT}, v{vT+2}, 4, v{vT}
            s_mul_i32 {sT0}, {sMB}, 192
            s_mul_i32 {sT1}, {sWV}, 48
            s_add_u32 {sT0}, {sT0}, {sT1}
            s_lshl_b32 {sT0}, {sT0}, 12
            s_lshl_b32 {sT1}, {sP}, 11
            s_add_u32 {sT0}, {sT0}, {sT1}
            s_lshl_b32 {sT1}, {sHS}, 8
            s_add_u32 {sT0}, {sT0}, {sT1}
            s_lshl_b32 {sT1}, {sG}, 7
            s_add_u32 {sT0}, {sT0}, {sT1}""")
            for mt in range(3):
                if mt: a(f"s_add_u32 {sT0}, {sT0}, 65536")
                for pr in range(2):
                    a(f"buffer_store_dwordx4 {vr(dst(mt, pr))}, v{vT}, {srd(SOUT)}, {sT0} offen offset:{pr*64}")
        a.lab(CE)
        if s.stamps: a("s_waitcnt vmcnt(0)")
        s.stamp()
        s.stamp_dump()
        a.lab(f"{kname}_end")
        a("s_endpgm")

    def kernel(s, kname, progs, has_main, tailcfg):
        s.setup(kname, progs)
        s.compute(kname, has_main, tailcfg)
        s.loader(kname, has_main, tailcfg)

    def desc(s, kname):
        return f""".amdhsa_kernel {kname}
  .amdhsa_next_free_vgpr 256
  .amdhsa_next_free_sgpr 102
  .amdhsa_accum_offset 256
  .amdhsa_group_segment_fixed_size 0
  .amdhsa_kernarg_size 104
  .amdhsa_user_sgpr_count 2
  .amdhsa_user_sgpr_kernarg_segment_ptr 1
  .amdhsa_system_sgpr_workgroup_id_x 1
.end_amdhsa_kernel"""

    def build(s):
        def prog(l):
            v = 0
            for i, c in enumerate(l): v |= c << (4 * i)
            return v
        hdr = []
        K = NAME + "_kernel"
        if s.mode == "fused":
            hdr.append("; @launch grid=(256,1,1) block=(512,1,1) lds=163840")
            s.kernel(K, (prog([1, 3, 9, 11, 5, 6]), prog([10, 1, 3, 5, 12, 6])), True, dict(sync=True, kst=48, n=16))
            ks = [K]
        else:
            K2 = "oproj_kernel"
            hdr.append(f"; @launch kernel={K} grid=(256,1,1) block=(512,1,1) lds=163840")
            hdr.append(f"; @launch kernel={K2} grid=(256,1,1) block=(512,1,1) lds=163840")
            s.kernel(K, (prog([1, 3, 9, 11]), prog([10, 1, 3, 12])), True, None)
            st = s.stamps; s.stamps = False
            s.kernel(K2, (6, 6), False, dict(sync=False, kst=0, n=64))
            s.stamps = st
            ks = [K, K2]
        out = hdr + ['.amdgcn_target "amdgcn-amd-amdhsa--gfx950"', ".text"] + s.a.l
        out += ['.section .rodata,"a"']
        for k in ks: out += [".p2align 6", s.desc(k)]
        return "\n".join(out) + "\n"

if __name__ == "__main__":
    import argparse, json
    ap = argparse.ArgumentParser()
    ap.add_argument("-o", default="k.s"); ap.add_argument("--mode", default="fused"); ap.add_argument("--stamps", action="store_true")
    ap.add_argument("--opts", default="{}")
    A = ap.parse_args()
    open(A.o, "w").write(Gen(A.mode, A.stamps, json.loads(A.opts)).build())
```

```python
import sys, re, math
NAME = "concat_heads__mha_block_cached__gqa_block_cached__near_ridge"

SLOT = 40960
NSLOT = 4
WS_Q = 0x0
WS_O = 0x2000000
WS_P = 0x4000000
WS_T = 0x8000000
WS_SIZE = 308281344
THR = 8.0
QSCALE = math.log2(math.e) / math.sqrt(128.0)

import struct
def f32(x): return "0x%08x" % struct.unpack("<I", struct.pack("<f", x))[0]

class Asm:
    def __init__(s): s.l = []; s.uid = 0
    def __call__(s, t):
        for x in t.split("\n"):
            x = x.strip()
            if x: s.l.append("    " + x)
    def lab(s, n): s.l.append(n + ":")
    def c(s, t): s.l.append("    ; " + t)
    def new(s, p): s.uid += 1; return f"{p}_{s.uid}"

class LQ:
    def __init__(s, a): s.a = a; s.q = []
    def rd(s, ins, tag):
        s.a(ins); s.q.append(tag); assert len(s.q) <= 15, "lgkm overflow"
    def need(s, tag):
        idx = [i for i, t in enumerate(s.q) if t == tag]
        if not idx: return
        n = len(s.q) - 1 - idx[-1]
        s.a(f"s_waitcnt lgkmcnt({n})"); s.q = s.q[idx[-1] + 1:]
    def drain(s):
        s.a("s_waitcnt lgkmcnt(0)"); s.q = []

def vr(b, n=4): return f"v[{b}:{b+n-1}]"
def mfma(d, a_, b_, c): return f"v_mfma_f32_16x16x32_bf16 {vr(d)}, {vr(a_)}, {vr(b_)}, {c if isinstance(c, str) else vr(c)}"

sWG, sWV, sP, sG, sMB, sHS, sROT, sPM = "s2", "s3", "s4", "s5", "s6", "s7", "s8", "s9"
sPROG, sSEL = "s10", "s11"
SA, SB, SK, SV, SWS, SOUT, SDBG = 28, 32, 36, 40, 44, 48, 52
def srd(b): return f"s[{b}:{b+3}]"
sSLOT, sI, sN, sT0, sT1, sT2, sCODE = "s56", "s57", "s58", "s59", "s60", "s61", "s62"
sFIRST, sKST, sMASK, sROFF, sBA, sMA, sJA, sBB, sMBm, sJB, sPOLL, sA, sB_, sM0, sK0, sK1, sTILE = \
    "s63", "s64", "s65", "s66", "s67", "s68", "s69", "s70", "s71", "s72", "s73", "s74", "s75", "s76", "s77", "s78", "s79"
sDL, sPEND, sFOFF, sFSH, sHEAD = "s63", "s64", "s65", "s66", "s67"
sSTAMP = 80

vLANE, vA0, vA1, vA2 = 0, 1, 2, 3
vT = 4
vONES = 8
vCI = 12
vL = 24
vRING = 36
vM = 52
vS = 64
vACC = 112
vQ = 208
def acc(nt, mt): return vACC + (nt * 3 + mt) * 4
def qreg(mt, ks): return vQ + (mt * 4 + ks) * 4

class Gen:
    def __init__(s, mode="fused", stamps=False, opts=None):
        s.mode = mode; s.stamps = stamps; s.a = Asm(); s.o = opts or {}
        s.nst = 0
        global WS_Q, WS_O, WS_P
        base = int(s.o.get("wsbase", 0))
        WS_Q = base; WS_O = base + 0x1000000; WS_P = base + 0x3000000
        if base == 0: WS_O = 0x2000000; WS_P = 0x4000000

    def stamp(s):
        if not s.stamps: return
        a = s.a
        a("s_memrealtime s[100:101]\ns_waitcnt lgkmcnt(0)")
        for i in range(sSTAMP + 15, sSTAMP, -1): a(f"s_mov_b32 s{i}, s{i-1}")
        a(f"s_mov_b32 s{sSTAMP}, s100")

    def stamp_dump(s):
        if not s.stamps: return
        a = s.a
        a(f"s_lshl_b32 {sT0}, {sWG}, 3\ns_add_u32 {sT0}, {sT0}, {sWV}\ns_lshl_b32 {sT0}, {sT0}, 6\ns_add_u32 {sT0}, {sT0}, {WS_T}")
        a(f"v_mov_b32 v{vT}, 0")
        for i in range(16):
            a(f"v_mov_b32 v{vT+1}, s{sSTAMP+i}\nbuffer_store_dword v{vT+1}, v{vT}, {srd(SWS)}, {sT0} offen offset:{4*i}\ns_nop 1")
        a("s_waitcnt vmcnt(0)")

    def setup(s, kname, progs):
        a = s.a
        a.l.append(f".globl {kname}\n.p2align 8\n.type {kname},@function\n{kname}:")
        a(f"""s_cmp_ge_u32 {sWG}, 256
        s_cbranch_scc1 {kname}_end
        s_and_b32 {sT0}, {sWG}, 7
        s_lshr_b32 {sP}, {sT0}, 2
        s_mul_i32 {sT1}, {sP}, 40
        s_add_u32 s60, s0, {sT1}
        s_addc_u32 s61, s1, 0
        s_load_dwordx8 s[12:19], s[60:61], 0
        s_load_dwordx2 s[20:21], s[60:61], 32
        s_load_dwordx2 s[22:23], s[0:1], 96
        s_load_dwordx4 s[24:27], s[0:1], 80
        v_lshrrev_b32 v1, 6, v0
        v_and_b32 v{vLANE}, 63, v0
        v_readfirstlane_b32 {sWV}, v1
        s_bfe_u32 {sG}, {sWG}, 0x10003
        s_lshr_b32 {sI}, {sWG}, 4
        s_and_b32 {sN}, {sI}, 3
        s_lshr_b32 {sI}, {sI}, 2
        s_add_u32 {sROT}, {sN}, {sI}
        s_and_b32 {sROT}, {sROT}, 3
        s_and_b32 {sMB}, {sT0}, 1
        s_lshl_b32 {sMB}, {sMB}, 2
        s_add_u32 {sMB}, {sMB}, {sN}
        s_bfe_u32 {sHS}, {sT0}, 0x10001
        s_lshl_b32 {sHS}, {sHS}, 2
        s_add_u32 {sHS}, {sHS}, {sI}
        s_lshl_b32 {sPM}, {sP}, 3
        s_add_u32 {sPM}, {sPM}, {sMB}
        s_cmp_eq_u32 {sG}, 0
        s_cselect_b32 {sPROG}, {hex(progs[0])}, {hex(progs[1])}""" if progs[0] == progs[1] else f"""s_cmp_ge_u32 {sWG}, 256
        s_cbranch_scc1 {kname}_end
        s_and_b32 {sT0}, {sWG}, 7
        s_lshr_b32 {sP}, {sT0}, 2
        s_mul_i32 {sT1}, {sP}, 40
        s_add_u32 s60, s0, {sT1}
        s_addc_u32 s61, s1, 0
        s_load_dwordx8 s[12:19], s[60:61], 0
        s_load_dwordx2 s[20:21], s[60:61], 32
        s_load_dwordx2 s[22:23], s[0:1], 96
        s_load_dwordx4 s[24:27], s[0:1], 80
        v_lshrrev_b32 v1, 6, v0
        v_and_b32 v{vLANE}, 63, v0
        v_readfirstlane_b32 {sWV}, v1
        s_bfe_u32 {sG}, {sWG}, 0x10003
        s_lshr_b32 {sI}, {sWG}, 4
        s_and_b32 {sN}, {sI}, 3
        s_lshr_b32 {sI}, {sI}, 2
        s_add_u32 {sROT}, {sN}, {sI}
        s_and_b32 {sROT}, {sROT}, 3
        s_and_b32 {sMB}, {sT0}, 1
        s_lshl_b32 {sMB}, {sMB}, 2
        s_add_u32 {sMB}, {sMB}, {sN}
        s_bfe_u32 {sHS}, {sT0}, 0x10001
        s_lshl_b32 {sHS}, {sHS}, 2
        s_add_u32 {sHS}, {sHS}, {sI}
        s_lshl_b32 {sPM}, {sP}, 3
        s_add_u32 {sPM}, {sPM}, {sMB}
        s_mov_b32 {sPROG}, {hex(progs[0])}
        s_cmp_eq_u32 {sG}, 0
        s_cselect_b32 {sPROG}, {sPROG}, {hex(progs[1])}""")
        if "progs" in s.o and kname.startswith("concat"):
            a(f"s_mov_b32 {sPROG}, {s.o['progs'][0]}\ns_cmp_eq_u32 {sG}, 0\ns_cselect_b32 {sPROG}, {sPROG}, {s.o['progs'][1]}")
            a(f"s_cmp_eq_u32 {sPROG}, 0\ns_cbranch_scc1 {kname}_end")
        a(f"s_mov_b32 {sSLOT}, 0\ns_waitcnt lgkmcnt(0)")
        for (b, lo, size) in [(SA, 12, 3145728), (SB, 18, 8388608), (SK, 14, 67108864), (SV, 16, 67108864),
                              (SWS, 22, WS_SIZE), (SOUT, 24, 6291456), (SDBG, 26, 256)]:
            a(f"s_mov_b32 s{b}, s{lo}\ns_mov_b32 s{b+1}, s{lo+1}\ns_mov_b32 s{b+2}, {size}\ns_mov_b32 s{b+3}, 0x20000")
        if s.stamps:
            for i in range(16): a(f"s_mov_b32 s{sSTAMP+i}, 0")
        s.stamp()
        a(f"s_cmp_ge_u32 {sWV}, 4\ns_cbranch_scc1 {kname}_loader")

    def next_slot(s, reg):
        s.a(f"s_add_u32 {reg}, {reg}, {SLOT}\ns_cmp_eq_u32 {reg}, {SLOT*NSLOT}\ns_cselect_b32 {reg}, 0, {reg}")

    def decode(s):
        s.a(f"s_and_b32 {sCODE}, {sPROG}, 7\ns_bfe_u32 {sSEL}, {sPROG}, 0x10003\ns_lshr_b32 {sPROG}, {sPROG}, 4")

    def head_of_sel(s, dst):
        s.a(f"s_lshl_b32 {dst}, {sSEL}, 1\ns_add_u32 {dst}, {dst}, {sG}\ns_lshl_b32 {dst}, {dst}, 3\ns_add_u32 {dst}, {dst}, {sHS}")

    def poll(s, off_reg, mask_reg, vtmp, vzero):
        a = s.a; L = a.new("L_poll"); D = a.new("L_polld")
        a(f"s_mov_b32 {sT2}, 0x40000")
        a.lab(L)
        a(f"""buffer_load_dword v{vtmp}, v{vzero}, {srd(SDBG)}, {off_reg} offen sc1
        s_waitcnt vmcnt(0)
        v_readfirstlane_b32 {sT0}, v{vtmp}
        s_and_b32 {sT0}, {sT0}, {mask_reg}
        s_cmp_eq_u32 {sT0}, {mask_reg}
        s_cbranch_scc1 {D}
        s_sleep 4
        s_sub_u32 {sT2}, {sT2}, 1
        s_cmp_lg_u32 {sT2}, 0
        s_cbranch_scc1 {L}""")
        a.lab(D)

    def unit_end(s, n):
        a = s.a; L = a.new("L_ue")
        s.next_slot(sSLOT)
        a(f"s_cmp_eq_u32 {sFIRST}, 0\ns_mov_b32 {sFIRST}, 0\ns_cbranch_scc0 {L}\ns_waitcnt vmcnt({n})\ns_barrier")
        a.lab(L)

    def loader_gemm_loop(s, kname, tail, polls):
        a = s.a; L = a.new("L_lg")
        vRA, vRB = 10, 11
        a(f"s_mov_b32 {sI}, 0")
        a.lab(L)
        if polls:
            S = a.new("L_nop")
            a(f"s_and_b32 {sT0}, {sI}, 7\ns_or_b32 {sT0}, {sT0}, {sPOLL}\ns_cmp_lg_u32 {sT0}, 0\ns_cbranch_scc1 {S}")
            a(f"""s_add_u32 {sT0}, {sKST}, {sI}
            s_lshr_b32 {sT0}, {sT0}, 3
            s_lshr_b32 {sT1}, {sT0}, 2
            s_lshl_b32 {sB_}, 0x01010101, {sT1}
            s_and_b32 {sT0}, {sT0}, 3
            s_lshl_b32 {sA}, {sPM}, 2
            s_add_u32 {sA}, {sA}, {sT0}
            s_lshl_b32 {sA}, {sA}, 2""")
            s.poll(sA, sB_, 14, 15)
            a.lab(S)
        a(f"""s_add_u32 {sT0}, {sI}, {sROFF}
        s_and_b32 {sT0}, {sT0}, {sMASK}
        s_andn2_b32 {sT1}, {sI}, {sMASK}
        s_add_u32 {sT0}, {sT0}, {sT1}
        s_add_u32 {sT0}, {sT0}, {sKST}
        s_mul_i32 {sA}, {sT0}, {sMA}
        s_add_u32 {sA}, {sA}, {sBA}
        s_mul_i32 {sB_}, {sT0}, {sMBm}
        s_add_u32 {sB_}, {sB_}, {sBB}
        s_lshl_b32 {sT1}, {sWV}, 10
        s_add_u32 {sM0}, {sSLOT}, {sT1}""")
        fa = s.o.get("fa", "sc1"); fb = s.o.get("fb", "")
        for j in range(6):
            a(f"s_add_u32 m0, {sM0}, {j*4096}")
            if j: a(f"s_add_u32 {sA}, {sA}, {sJA}")
            else: a("s_nop 0")
            a(f"buffer_load_dwordx4 v{vRA}, {srd(SA)}, {sA} offen {fa} lds")
        if tail:
            for oo in range(2):
                a(f"s_add_u32 m0, {sM0}, {24576 + oo*4096}")
                if oo: a(f"s_add_u32 {sB_}, {sB_}, {sJB}")
                else: a("s_nop 0")
                a(f"buffer_load_dwordx4 v{vRB}, {srd(SB)}, {sB_} offen {fb} lds")
            n = 8
        else:
            a(f"s_add_u32 {sM0}, {sM0}, {sT1}")
            for oo in range(2):
                for hf in range(2):
                    a(f"s_add_u32 m0, {sM0}, {24576 + oo*8192 + hf*(1024-128)}")
                    if oo and not hf: a(f"s_add_u32 {sB_}, {sB_}, {sJB}")
                    else: a("s_nop 0")
                    a(f"buffer_load_dwordx4 v{vRB}, {srd(SB)}, {sB_} offen offset:{hf*128} {fb} lds")
            n = 10
        s.unit_end(n)
        a(f"s_add_u32 {sI}, {sI}, 1\ns_cmp_lt_u32 {sI}, {sN}\ns_cbranch_scc1 {L}")

    def loader_o_params(s, kst, n, tail):
        a = s.a
        a(f"""s_mov_b32 s{SA}, s22
        s_mov_b32 s{SA+1}, s23
        s_mov_b32 s{SA+2}, {WS_SIZE}
        s_mov_b32 s{SB}, s20
        s_mov_b32 s{SB+1}, s21
        v_mov_b32 v10, v8
        v_mov_b32 v11, v9
        s_mul_i32 {sBA}, {sPM}, {32*49152}
        s_add_u32 {sBA}, {sBA}, {WS_O}
        s_mov_b32 {sMA}, 24576
        s_mov_b32 {sJA}, 4096
        s_lshl_b32 {sBB}, {sHS}, 8
        s_mov_b32 {sMBm}, {64*2048}
        s_mov_b32 {sJB}, {32*2048}
        s_mov_b32 {sMASK}, 7
        s_lshl_b32 {sROFF}, {sROT}, 1
        s_mov_b32 {sN}, {n}
        s_mov_b32 {sPOLL}, 0""")
        if isinstance(kst, int): a(f"s_mov_b32 {sKST}, {kst}")
        else: a(kst)
        if tail: a(f"s_lshl_b32 {sT0}, {sG}, 7\ns_add_u32 {sBB}, {sBB}, {sT0}")

    def loader(s, kname, has_main, tailcfg):
        a = s.a
        a.lab(f"{kname}_loader")
        a(f"s_sub_u32 {sWV}, {sWV}, 4\ns_mov_b32 {sFIRST}, 1")
        a(f"""v_lshrrev_b32 v1, 5, v0
        v_lshlrev_b32 v1, 6, v1
        v_bfe_u32 v2, v0, 2, 3
        v_and_b32 v3, 3, v0
        s_lshl_b32 {sT0}, {sWV}, 3
        v_add_u32 v4, {sT0}, v2
        v_mov_b32 v15, 0""")
        a(f"""v_lshrrev_b32 v5, 2, v4
        v_sub_u32 v5, 0, v5
        v_and_b32 v5, 3, v5
        v_xor_b32 v5, v5, v3
        v_lshlrev_b32 v5, 4, v5
        v_lshlrev_b32 v6, 11, v4
        v_add3_u32 v6, v6, v5, v1""")
        a(f"""s_and_b32 {sT0}, {sWV}, 1
        s_lshl_b32 {sT1}, {sT0}, 1
        v_xor_b32 v5, {sT1}, v3
        v_lshlrev_b32 v5, 4, v5
        v_add_u32 v5, v5, v1
        v_lshl_add_u32 v7, v4, 13, v5
        v_lshl_add_u32 v9, v4, 11, v5
        s_lshl_b32 {sT1}, {sWV}, 10
        v_lshlrev_b32 v8, 4, v0
        v_add_u32 v8, {sT1}, v8""")
        a(f"""v_xor_b32 v5, {sT0}, v3
        v_lshlrev_b32 v5, 4, v5
        v_add_u32 v5, v5, v1
        v_lshl_add_u32 v12, v4, 8, v5
        v_lshrrev_b32 v5, 2, v2
        v_lshlrev_b32 v5, 1, v5
        v_xor_b32 v5, v5, v3
        v_lshlrev_b32 v5, 4, v5
        v_add_u32 v5, v5, v1
        v_lshl_add_u32 v13, v4, 8, v5
        v_mov_b32 v10, v6
        v_mov_b32 v11, v7""")
        LN = f"{kname}_lnext"; LG = f"{kname}_lgemm"; LA = f"{kname}_latt"; LO = f"{kname}_lomid"; LT = f"{kname}_ltail"; LE = f"{kname}_lend"
        a.lab(LN)
        s.decode()
        if tailcfg is not None:
            a(f"s_cmp_eq_u32 {sCODE}, 6\ns_cbranch_scc1 {LT}")
        if has_main:
            a(f"s_cmp_eq_u32 {sCODE}, 0\ns_cbranch_scc1 {LE}")
            if s.mode == "fused": a(f"s_cmp_eq_u32 {sCODE}, 5\ns_cbranch_scc1 {LO}")
            a(f"s_cmp_ge_u32 {sCODE}, 3\ns_cbranch_scc1 {LA}")
            s.head_of_sel(sT0)
            a(f"""s_mul_i32 {sBA}, {sMB}, {192*2048}
            s_mov_b32 {sMA}, 128
            s_mov_b32 {sJA}, 65536
            s_lshl_b32 {sBB}, {sT0}, 8
            s_mov_b32 {sMBm}, {64*8192}
            s_mov_b32 {sJB}, {32*8192}
            s_mov_b32 {sMASK}, 15
            s_lshl_b32 {sROFF}, {sROT}, 2
            s_lshl_b32 {sT0}, {sG}, 1
            s_add_u32 {sROFF}, {sROFF}, {sT0}
            s_mov_b32 {sKST}, 0
            s_mov_b32 {sN}, 16
            s_mov_b32 {sPOLL}, 1""")
            a.lab(LG)
            s.loader_gemm_loop(kname, False, s.mode == "fused")
            a(f"s_branch {LN}")
            if s.mode == "fused":
                a.lab(LO)
                s.loader_o_params(f"s_sub_u32 {sT0}, 1, {sG}\ns_mul_i32 {sKST}, {sT0}, 24", 24, False)
                a(f"s_branch {LG}")
            a.lab(LA)
            s.head_of_sel(sT0)
            a(f"""s_lshl_b32 {sT1}, {sMB}, 6
            s_add_u32 {sT0}, {sT0}, {sT1}
            s_lshl_b32 {sK0}, {sT0}, 17
            s_lshr_b32 {sTILE}, {sWG}, {s.o.get("rotsh", 4)}
            s_and_b32 {sTILE}, {sTILE}, 15
            s_lshl_b32 {sTILE}, {sTILE}, 13
            s_mov_b32 {sI}, 0""")
            if not s.o.get("krot", True): a(f"s_mov_b32 {sTILE}, 0")
            fk = s.o.get("fk", "nt")
            def kv(sr, vo, base):
                a(f"s_add_u32 {sA}, {sK0}, {sTILE}\ns_add_u32 {sB_}, {sA}, {4194304}")
                for it in range(2):
                    for hf in range(2):
                        a(f"s_add_u32 m0, {sM0}, {base + it*8192 + hf*(1024-128)}\ns_nop 0")
                        a(f"buffer_load_dwordx4 v{vo}, {srd(sr)}, {sA if it == 0 else sB_} offen offset:{hf*128} {fk} lds")
            def m0base(): a(f"s_lshl_b32 {sT1}, {sWV}, 11\ns_add_u32 {sM0}, {sSLOT}, {sT1}")
            m0base(); kv(SK, 12, 0); s.unit_end(4)
            L = a.new("L_la"); a.lab(L)
            m0base()
            a(f"s_mov_b32 {sK1}, {sTILE}\ns_add_u32 {sTILE}, {sTILE}, 8192\ns_and_b32 {sTILE}, {sTILE}, 0x1ffff")
            kv(SK, 12, 0)
            a(f"s_mov_b32 {sT0}, {sTILE}\ns_mov_b32 {sTILE}, {sK1}")
            a(f"s_mov_b32 {sK1}, {sT0}")
            kv(SV, 13, 16384)
            a(f"s_mov_b32 {sTILE}, {sK1}")
            s.unit_end(8)
            a(f"s_add_u32 {sI}, {sI}, 1\ns_cmp_lt_u32 {sI}, 15\ns_cbranch_scc1 {L}")
            m0base(); kv(SV, 13, 16384); s.unit_end(4)
            a(f"s_branch {LN}")
        if tailcfg is not None:
            a.lab(LT)
            if tailcfg["sync"]:
                a(f"s_waitcnt vmcnt(0)\ns_barrier\ns_barrier\ns_mov_b32 {sFIRST}, 1")
            s.loader_o_params(tailcfg["kst"], tailcfg["n"], True)
            s.loader_gemm_loop(kname, True, tailcfg["sync"])
        a.lab(LE)
        a("s_waitcnt vmcnt(0)\ns_barrier")
        s.stamp()
        if s.stamps: a(f"s_add_u32 {sWV}, {sWV}, 4")
        s.stamp_dump()
        a("s_endpgm")

    def adv_addr(s):
        a = s.a
        a(f"s_mov_b32 {sDL}, {sSLOT}")
        s.next_slot(sSLOT)
        a(f"s_sub_u32 {sDL}, {sSLOT}, {sDL}")
    def adv_apply(s):
        for r in (vA0, vA1, vA2): s.a(f"v_add_u32 v{r}, {sDL}, v{r}")

    def pack_acc(s, nts, scale, dst):
        a = s.a
        for mt in range(3):
            for pr in range(nts // 2):
                d = dst(mt, pr); x = acc(2 * pr, mt); y = acc(2 * pr + 1, mt)
                if scale is not None:
                    for r in range(4): a(f"v_mul_f32 v{x+r}, {scale(mt)}, v{x+r}")
                    for r in range(4): a(f"v_mul_f32 v{y+r}, {scale(mt)}, v{y+r}")
                a(f"v_cvt_pk_bf16_f32 v{d}, v{x}, v{x+1}\nv_cvt_pk_bf16_f32 v{d+2}, v{y}, v{y+1}")
                a(f"v_cvt_pk_bf16_f32 v{d+1}, v{x+2}, v{x+3}\nv_cvt_pk_bf16_f32 v{d+3}, v{y+2}, v{y+3}")
                a(f"s_nop 0\nv_permlane16_swap_b32 v{d}, v{d+2}\nv_permlane16_swap_b32 v{d+1}, v{d+3}")

    def signal(s):
        a = s.a; L = a.new("L_sig")
        a(f"""s_cmp_lg_u32 {sWV}, 0
        s_cbranch_scc1 {L}
        s_cmp_eq_u32 {sPEND}, 0
        s_cbranch_scc1 {L}
        s_lshl_b32 {sT0}, {sPEND}, {sFSH}
        v_mov_b32 v{vT}, {sT0}
        v_mov_b32 v{vT+1}, 0
        s_mov_b64 exec, 1
        buffer_atomic_add v{vT}, v{vT+1}, {srd(SDBG)}, {sFOFF} offen sc1
        s_mov_b64 exec, -1""")
        a.lab(L)
        a(f"s_mov_b32 {sPEND}, 0")

    def gemm_addr(s, tail):
        a = s.a
        a(f"""v_bfe_u32 v{vT}, v0, 3, 1
        s_mul_i32 {sT0}, {sWV}, 6
        v_add_u32 v{vT}, {sT0}, v{vT}
        v_lshlrev_b32 v{vT}, 10, v{vT}
        v_and_b32 v{vT+1}, 7, v0
        v_lshl_add_u32 v{vT}, v{vT+1}, 6, v{vT}
        v_lshrrev_b32 v{vT+1}, 2, v0
        v_sub_u32 v{vT+1}, 0, v{vT+1}
        v_and_b32 v{vT+1}, 3, v{vT+1}
        v_lshrrev_b32 v{vT+2}, 4, v0
        v_xor_b32 v{vT+1}, v{vT+1}, v{vT+2}
        v_lshl_add_u32 v{vT}, v{vT+1}, 4, v{vT}
        v_add_u32 v{vA0}, {sSLOT}, v{vT}""")
        sh = 10 if tail else 11
        a(f"""v_lshlrev_b32 v{vT}, {sh}, v{vT+2}
        v_bfe_u32 v{vT+1}, v0, 2, 2
        v_lshl_add_u32 v{vT}, v{vT+1}, 6, v{vT}
        v_and_b32 v{vT+1}, 1, v{vT+2}
        v_lshl_add_u32 v{vT}, v{vT+1}, 5, v{vT}
        v_and_b32 v{vT+1}, 3, v0
        v_lshl_add_u32 v{vT}, v{vT+1}, 3, v{vT}
        v_add_u32 v{vT}, 24576, v{vT}
        v_xor_b32 v{vT+1}, 32, v{vT}
        v_add_u32 v{vA1}, {sSLOT}, v{vT}
        v_add_u32 v{vA2}, {sSLOT}, v{vT+1}""")

    def gemm_loop(s, tail, hook):
        a = s.a; q = LQ(a)
        NT = 4 if tail else 8
        R = 8; LA = s.o.get("gla", 5) if not tail else 4
        vX = vS; vW = vS + 24
        wreg = [88, 92, 96, 100, 104, 108, 36, 40]
        NF = 2 * NT
        kso = 4096 if tail else 8192
        def rdW(f):
            ks, nt = (f % NF) // NT, f % NT
            r = wreg[f % R]; ad = vA1 if nt % 2 == 0 else vA2
            for sec in range(2):
                q.rd(f"ds_read_b64_tr_b16 {vr(r + 2*sec, 2)}, v{ad} offset:{ks*kso + (nt>>1)*512 + sec*256}", ("W", f % NF))
        def rdX(ks, mt):
            q.rd(f"ds_read_b128 {vr(vX + ks*12 + mt*4)}, v{vA0} offset:{mt*2048 + ks*512}", ("X", ks, mt))
        def grp(f, reads):
            ks, nt = f // NT, f % NT
            q.need(("W", f))
            for mt in range(3):
                q.need(("X", ks, mt))
                a(mfma(acc(nt, mt), wreg[f % R], vX + ks*12 + mt*4, acc(nt, mt)))
                if mt < len(reads): reads[mt]()
            for r in reads[3:]: r()
        a("s_barrier")
        s.stamp()
        for mt in range(3): rdX(0, mt)
        for f in range(LA): rdW(f)
        a(f"s_mov_b32 {sI}, 1")
        q0 = list(q.q)
        L = a.new("L_gl"); F = a.new("L_gf"); B = a.new("L_gb"); H = a.new("L_gh")
        a.lab(L)
        cut = NF - LA
        for f in range(cut):
            reads = [lambda f=f: rdW(f + LA)]
            if f < 3: reads.append(lambda f=f: rdX(1, f))
            if f == cut - 1: reads.append(lambda: s.adv_addr())
            grp(f, reads)
        qcut = list(q.q)
        a(f"s_cmp_eq_u32 {sI}, {sN}\ns_cbranch_scc1 {F}")
        if hook: a(f"s_cmp_eq_u32 {sI}, {hook[0]}\ns_cbranch_scc1 {H}")
        a("s_barrier")
        a.lab(B)
        s.adv_apply()
        a(f"s_add_u32 {sI}, {sI}, 1")
        for f in range(cut, NF):
            reads = []
            if f == cut: reads = [lambda: rdX(0, 0), lambda: rdX(0, 1), lambda: rdX(0, 2)]
            reads.append(lambda f=f: rdW(f + LA))
            grp(f, reads)
        assert q.q == q0, (q.q, q0)
        a(f"s_branch {L}")
        if hook:
            a.lab(H); hook[1](); a(f"s_branch {B}")
        a.lab(F)
        q.q = qcut
        for f in range(cut, NF): grp(f, [])
        a("s_nop 7")
        s.stamp()

    def att(s):
        a = s.a; q = LQ(a)
        def S(par, qt, kt=0): return vS + par * 24 + qt * 8 + kt * 4
        ring = lambda f: vRING + (f % 4) * 4
        def rd(f):
            f %= 16
            if f < 8:
                q.rd(f"ds_read_b128 {vr(ring(f))}, v{vA0} offset:{(f >> 2)*4096 + (f & 3)*512}", f)
            else:
                dt = f - 8; ad = vA1 if dt % 2 == 0 else vA2
                for sec in range(2):
                    q.rd(f"ds_read_b64_tr_b16 {vr(ring(f) + 2*sec, 2)}, v{ad} offset:{sec*4096 + (dt >> 1)*512}", f)
        a(f"""v_lshrrev_b32 v{vT+2}, 4, v0
        s_lshr_b32 {sT0}, {sWV}, 1
        s_lshl_b32 {sT0}, {sT0}, 13
        s_add_u32 {sT0}, {sT0}, {sSLOT}
        v_bfe_u32 v{vT}, v0, 3, 1
        v_lshrrev_b32 v{vT+1}, 1, v{vT+2}
        v_and_b32 v{vT+3}, 1, v{vT+2}
        v_lshl_or_b32 v{vM}, v{vT+3}, 1, v{vT+1}
        v_xor_b32 v{vM}, v{vM}, v{vT}
        v_lshlrev_b32 v{vM}, 4, v{vM}
        v_lshl_add_u32 v{vM}, v{vT}, 11, v{vM}
        v_and_b32 v{vT}, 7, v0
        v_lshl_add_u32 v{vM}, v{vT}, 6, v{vM}
        v_add_u32 v{vA0}, {sT0}, v{vM}
        v_lshlrev_b32 v{vM}, 11, v{vT+1}
        v_bfe_u32 v{vT}, v0, 2, 3
        v_lshl_add_u32 v{vM}, v{vT}, 6, v{vM}
        v_lshl_add_u32 v{vM}, v{vT+3}, 5, v{vM}
        v_and_b32 v{vT}, 3, v0
        v_lshl_add_u32 v{vM}, v{vT}, 3, v{vM}
        v_add_u32 v{vM}, 16384, v{vM}
        v_xor_b32 v{vT}, 32, v{vM}
        v_add_u32 v{vA1}, {sT0}, v{vM}
        v_add_u32 v{vA2}, {sT0}, v{vT}""")
        for r in range(4): a(f"v_mov_b32 v{vONES+r}, 0x3f803f80")
        for r in range(12): a(f"v_mov_b32 v{vL+r}, 0")
        for r in range(96): a(f"v_mov_b32 v{vACC+r}, 0")
        a("s_waitcnt vmcnt(0)" if True else "")
        a("s_barrier")
        s.stamp()
        def qk(par, f, c0, fill):
            kt, ks = f >> 2, f & 3
            q.need(f)
            for qt in range(3):
                d = S(par, qt, kt)
                a(mfma(d, ring(f), qreg(qt, ks), (c0(qt) if ks == 0 else d)))
                for x in fill[qt]: x()
        def rowmax(par, qt, dst, tmp):
            b = S(par, qt)
            a(f"v_max3_f32 v{dst}, v{b}, v{b+1}, v{b+2}\nv_max3_f32 v{dst}, v{dst}, v{b+3}, v{b+4}\nv_max3_f32 v{dst}, v{dst}, v{b+5}, v{b+6}\nv_max_f32 v{dst}, v{dst}, v{b+7}")
            a(f"v_mov_b32 v{tmp}, v{dst}\ns_nop 1\nv_permlane16_swap_b32 v{dst}, v{tmp}\ns_nop 1\nv_max_f32 v{dst}, v{dst}, v{tmp}")
            a(f"v_mov_b32 v{tmp}, v{dst}\ns_nop 1\nv_permlane32_swap_b32 v{dst}, v{tmp}\ns_nop 1\nv_max_f32 v{dst}, v{dst}, v{tmp}")
        for f in range(3): rd(f)
        for f in range(8):
            qk(0, f, lambda qt: "0", [[lambda f=f: rd(f + 3)] if f + 3 < 8 else [], [], []])
        s.adv_addr()
        a("s_barrier")
        s.adv_apply()
        for f in range(3): rd(f)
        a("s_nop 1")
        for qt in range(3):
            rowmax(0, qt, vM + qt, vM + 4)
            for r in range(8): a(f"v_sub_f32 v{S(0,qt)+r}, v{S(0,qt)+r}, v{vM+qt}")
            for r in range(4): a(f"v_sub_f32 v{vCI+qt*4+r}, 0, v{vM+qt}")
        a(f"s_mov_b32 {sI}, 0")
        q0 = list(q.q)
        def ex(par, i): return lambda: a(f"v_exp_f32 v{vS+par*24+i}, v{vS+par*24+i}")
        def cv(par, pr):
            qt, k = pr // 4, pr % 4; b = S(par, qt)
            return lambda: a(f"v_cvt_pk_bf16_f32 v{b+k}, v{b+2*k}, v{b+2*k+1}")
        def pv(par, f, fill):
            dt = f - 8
            q.need(f)
            for qt in range(3):
                a(mfma(acc(dt, qt), ring(f), S(par, qt), acc(dt, qt)))
                for x in fill[qt]: x()
        def ones(par, qt): a(mfma(vL + qt*4, vONES, S(par, qt), vL + qt*4))
        rare = []
        def step(par):
            nx = par ^ 1
            for f in range(8):
                fill = []
                for qt in range(3):
                    i = f * 3 + qt; x = []
                    if qt == 0: x.append(lambda f=f: rd(f + 3))
                    x.append(ex(par, i))
                    if i >= 2 and i % 2 == 0: x.append(cv(par, i // 2 - 1))
                    fill.append(x)
                qk(nx, f, lambda qt: vCI + qt*4, fill)
            ones(par, 0); cv(par, 11)(); ones(par, 1); a("s_nop 0"); ones(par, 2)
            regs = [S(nx, qt, kt) + r for kt in range(2) for qt in range(3) for r in range(4)]
            mx = []
            m0_, m1_ = vM, vM + 1
            mx.append(f"v_max3_f32 v{m0_}, v{regs[0]}, v{regs[1]}, v{regs[2]}")
            mx.append(f"v_max3_f32 v{m1_}, v{regs[3]}, v{regs[4]}, v{regs[5]}")
            rest = regs[6:]
            for i in range(0, len(rest), 2):
                m = m0_ if (i // 2) % 2 == 0 else m1_
                mx.append(f"v_max3_f32 v{m}, v{m}, v{rest[i]}, v{rest[i+1]}")
            mx.append(f"v_max_f32 v{m0_}, v{m0_}, v{m1_}")
            mx.append(f"v_cmp_lt_f32 vcc, {f32(THR)}, v{m0_}")
            mi = iter(mx)
            def nm():
                x = next(mi, None)
                if x: a(x)
            for f in range(8, 16):
                fill = [[], [], []]
                if f == 13:
                    a("s_barrier"); s.adv_apply()
                fill[0].append(lambda f=f: rd(f + 3))
                if f == 12: fill[1].append(lambda: s.adv_addr())
                if f >= 9:
                    fill[1].append(nm); fill[2].append(nm)
                pv(par, f, fill)
            assert next(mi, None) is None
            R_ = a.new("L_rare"); Bk = a.new("L_back")
            a(f"s_cbranch_vccnz {R_}")
            a.lab(Bk)
            rare.append((R_, Bk, nx))
        L = a.new("L_al"); F = a.new("L_af")
        a.lab(L)
        step(0)
        assert q.q == q0
        a(f"s_cmp_eq_u32 {sI}, 7\ns_cbranch_scc1 {F}")
        step(1)
        assert q.q == q0
        a(f"s_add_u32 {sI}, {sI}, 1\ns_branch {L}")
        for (R_, Bk, nx) in rare:
            a.lab(R_)
            a("s_nop 7")
            for qt in range(3):
                rowmax(nx, qt, vM + qt, vM + 4)
                a(f"v_max_f32 v{vM+qt}, 0, v{vM+qt}\nv_sub_f32 v{vM+5}, 0, v{vM+qt}\nv_exp_f32 v{vM+5}, v{vM+5}")
                for r in range(8): a(f"v_sub_f32 v{S(nx,qt)+r}, v{S(nx,qt)+r}, v{vM+qt}")
                for r in range(4): a(f"v_sub_f32 v{vCI+qt*4+r}, v{vCI+qt*4+r}, v{vM+qt}")
                for r in range(4): a(f"v_mul_f32 v{vL+qt*4+r}, v{vL+qt*4+r}, v{vM+5}")
                for dt in range(8):
                    for r in range(4): a(f"v_mul_f32 v{acc(dt,qt)+r}, v{acc(dt,qt)+r}, v{vM+5}")
            a(f"s_nop 1\ns_branch {Bk}")
        a.lab(F)
        for f in range(8, 11): rd(f)
        for i in range(24):
            ex(1, i)()
            if i >= 2 and i % 2 == 0: cv(1, i // 2 - 1)()
        ones(1, 0); cv(1, 11)(); ones(1, 1); a("s_nop 0"); ones(1, 2)
        for f in range(8, 16):
            pv(1, f, [[lambda f=f: rd(f + 3)] if f + 3 < 16 else [], [], []])
        s.next_slot(sSLOT)
        s.stamp()
        for qt in range(3): a(f"v_rcp_f32 v{vM+qt}, v{vL+qt*4}")
        a(f"""v_bfe_u32 v{vT}, v0, 3, 1
        s_mul_i32 {sT0}, {sWV}, 6
        v_add_u32 v{vT}, {sT0}, v{vT}
        v_lshlrev_b32 v{vT}, 10, v{vT}
        v_and_b32 v{vT+1}, 7, v0
        v_lshl_add_u32 v{vT}, v{vT+1}, 6, v{vT}
        v_lshrrev_b32 v{vT+1}, 2, v0
        v_sub_u32 v{vT+1}, 0, v{vT+1}
        v_and_b32 v{vT+1}, 3, v{vT+1}
        v_lshrrev_b32 v{vT+2}, 5, v0
        v_bfe_u32 v{vT+3}, v0, 4, 1
        v_lshl_or_b32 v{vT+2}, v{vT+3}, 1, v{vT+2}
        v_xor_b32 v{vT+1}, v{vT+1}, v{vT+2}
        v_lshl_add_u32 v{vT}, v{vT+1}, 4, v{vT}
        v_add_u32 v{vT+1}, 4096, v{vT}""")
        s.head_of_sel(sT0)
        a(f"""s_lshl_b32 {sT1}, {sPM}, 5
        s_add_u32 {sT0}, {sT0}, {sT1}
        s_mul_i32 {sT0}, {sT0}, 49152
        s_add_u32 {sT0}, {sT0}, {WS_O}
        s_add_u32 {sT1}, {sT0}, 24576""")
        s.pack_acc(8, lambda mt: f"v{vM+mt}", qreg)
        for mt in range(3):
            for ks in range(4):
                a(f"buffer_store_dwordx4 {vr(qreg(mt, ks))}, v{vT + (1 if mt == 2 else 0)}, {srd(SWS)}, {sT0 if ks < 2 else sT1} offen offset:{(mt & 1)*2048 + (ks & 1)*512} sc1")
        a(f"s_lshl_b32 {sT0}, 1, {sSEL}\ns_or_b32 {sPEND}, {sPEND}, {sT0}")

    def wsq_addr(s):
        s.a(f"""s_mul_i32 {sT0}, {sWG}, 49152
        s_mul_i32 {sT1}, {sWV}, 12288
        s_add_u32 {sT0}, {sT0}, {sT1}
        s_add_u32 {sT0}, {sT0}, {WS_Q}
        v_lshlrev_b32 v{vT}, 4, v0""")

    def compute(s, kname, has_main, tailcfg):
        a = s.a
        CN = f"{kname}_cnext"; CA = f"{kname}_catt"; CT = f"{kname}_ctail"; CE = f"{kname}_cend"
        a(f"""s_lshl_b32 {sFOFF}, {sPM}, 1
        s_add_u32 {sFOFF}, {sFOFF}, {sG}
        s_lshl_b32 {sFOFF}, {sFOFF}, 1
        s_lshr_b32 {sT0}, {sHS}, 2
        s_add_u32 {sFOFF}, {sFOFF}, {sT0}
        s_lshl_b32 {sFOFF}, {sFOFF}, 2
        s_and_b32 {sFSH}, {sHS}, 3
        s_lshl_b32 {sFSH}, {sFSH}, 3
        s_mov_b32 {sPEND}, 0""")
        a.lab(CN)
        s.decode()
        if tailcfg is not None: a(f"s_cmp_eq_u32 {sCODE}, 6\ns_cbranch_scc1 {CT}")
        if has_main:
            a(f"s_cmp_eq_u32 {sCODE}, 0\ns_cbranch_scc1 {CE}")
            a(f"s_cmp_eq_u32 {sCODE}, 3\ns_cbranch_scc1 {CA}")
            G = a.new("L_cg")
            a(f"s_cmp_lg_u32 {sCODE}, 4\ns_cbranch_scc1 {G}")
            s.wsq_addr()
            a("s_waitcnt vmcnt(0)")
            for i in range(12):
                if i % 4 == 0 and i: a(f"s_add_u32 {sT0}, {sT0}, 4096")
                a(f"buffer_load_dwordx4 {vr(vQ + 4*i)}, v{vT}, {srd(SWS)}, {sT0} offen offset:{(i % 4)*1024} sc1")
            a(f"s_branch {CA}")
            a.lab(G)
            a(f"s_cmp_eq_u32 {sCODE}, 5\ns_cselect_b32 {sN}, 24, 16")
            s.gemm_addr(False)
            for r in range(96): a(f"v_mov_b32 v{vACC+r}, 0")
            def hk():
                a("s_waitcnt vmcnt(0)\ns_barrier"); s.signal()
            s.gemm_loop(False, (4, hk) if s.mode == "fused" else None)
            if s.mode == "fused":
                O5 = a.new("L_o5")
                a(f"s_cmp_eq_u32 {sCODE}, 5\ns_cbranch_scc1 {O5}")
            a(f"s_mov_b32 {sT2}, {f32(QSCALE)}")
            s.pack_acc(8, lambda mt: sT2, qreg)
            a(f"s_cmp_eq_u32 {sCODE}, 1\ns_cbranch_scc1 {CN}")
            s.wsq_addr()
            for i in range(12):
                if i % 4 == 0 and i: a(f"s_add_u32 {sT0}, {sT0}, 4096")
                a(f"buffer_store_dwordx4 {vr(vQ + 4*i)}, v{vT}, {srd(SWS)}, {sT0} offen offset:{(i % 4)*1024}")
            a(f"s_branch {CN}")
            if s.mode == "fused":
                a.lab(O5)
                a(f"""s_mul_i32 {sT0}, {sWG}, 98304
                s_mul_i32 {sT1}, {sWV}, 12288
                s_add_u32 {sT0}, {sT0}, {sT1}
                s_add_u32 {sT0}, {sT0}, {WS_P}
                v_lshlrev_b32 v{vT}, 4, v0""")
                for i in range(24):
                    if i == 12: a(f"s_add_u32 {sT0}, {sT0}, {49152 - 8192}")
                    elif i % 4 == 0 and i: a(f"s_add_u32 {sT0}, {sT0}, 4096")
                    a(f"buffer_store_dwordx4 {vr(vACC + 4*i)}, v{vT}, {srd(SWS)}, {sT0} offen offset:{(i % 4)*1024} sc1")
                a(f"s_or_b32 {sPEND}, {sPEND}, 4\ns_nop 0")
                a(f"s_branch {CN}")
            a.lab(CA)
            s.att()
            a(f"s_branch {CN}")
        if tailcfg is not None:
            a.lab(CT)
            if tailcfg["sync"]:
                a("s_waitcnt vmcnt(0)\ns_barrier"); s.signal()
                s.stamp()
            a(f"s_mov_b32 {sN}, {tailcfg['n']}")
            s.gemm_addr(True)
            for r in range(48): a(f"v_mov_b32 v{vACC+r}, 0")
            vP = vACC + 48
            def hk():
                a("s_barrier")
                a(f"s_xor_b32 {sFOFF}, {sFOFF}, 8\ns_lshl_b32 {sPEND}, 4, {sFSH}\nv_mov_b32 v{vT+1}, 0")
                s.poll(sFOFF, sPEND, vT, vT + 1)
                a(f"""s_and_b32 {sT0}, {sWG}, 0xf7
                s_mul_i32 {sT0}, {sT0}, 98304
                s_mul_i32 {sT1}, {sWV}, 12288
                s_add_u32 {sT0}, {sT0}, {sT1}
                s_mul_i32 {sT1}, {sG}, 49152
                s_add_u32 {sT0}, {sT0}, {sT1}
                s_add_u32 {sT0}, {sT0}, {WS_P}
                v_lshlrev_b32 v{vT}, 4, v0""")
                for i in range(24):
                    if i == 12: a(f"s_add_u32 {sT0}, {sT0}, {8*98304 - 8192}")
                    elif i % 4 == 0 and i: a(f"s_add_u32 {sT0}, {sT0}, 4096")
                    a(f"buffer_load_dwordx4 {vr(vP + 4*i)}, v{vT}, {srd(SWS)}, {sT0} offen offset:{(i % 4)*1024} sc1")
            s.gemm_loop(True, (tailcfg["n"] - 4, hk) if tailcfg["sync"] else None)
            if tailcfg["sync"]:
                a("s_waitcnt vmcnt(0)")
                for r in range(48): a(f"v_add_f32 v{vACC+r}, v{vACC+r}, v{vP+r}")
                for r in range(48): a(f"v_add_f32 v{vACC+r}, v{vACC+r}, v{vP+48+r}")
            dst = lambda mt, pr: vS + (mt * 2 + pr) * 4
            s.pack_acc(4, None, dst)
            a(f"""v_and_b32 v{vT}, 15, v0
            v_lshlrev_b32 v{vT}, 12, v{vT}
            v_lshrrev_b32 v{vT+2}, 5, v0
            v_bfe_u32 v{vT+3}, v0, 4, 1
            v_lshl_or_b32 v{vT+2}, v{vT+3}, 1, v{vT+2}
            v_lshl_add_u32 v{vT}, v{vT+2}, 4, v{vT}
            s_mul_i32 {sT0}, {sMB}, 192
            s_mul_i32 {sT1}, {sWV}, 48
            s_add_u32 {sT0}, {sT0}, {sT1}
            s_lshl_b32 {sT0}, {sT0}, 12
            s_lshl_b32 {sT1}, {sP}, 11
            s_add_u32 {sT0}, {sT0}, {sT1}
            s_lshl_b32 {sT1}, {sHS}, 8
            s_add_u32 {sT0}, {sT0}, {sT1}
            s_lshl_b32 {sT1}, {sG}, 7
            s_add_u32 {sT0}, {sT0}, {sT1}""")
            for mt in range(3):
                if mt: a(f"s_add_u32 {sT0}, {sT0}, 65536")
                for pr in range(2):
                    a(f"buffer_store_dwordx4 {vr(dst(mt, pr))}, v{vT}, {srd(SOUT)}, {sT0} offen offset:{pr*64}")
        a.lab(CE)
        if s.stamps: a("s_waitcnt vmcnt(0)")
        s.stamp()
        s.stamp_dump()
        a.lab(f"{kname}_end")
        a("s_endpgm")

    def kernel(s, kname, progs, has_main, tailcfg):
        s.setup(kname, progs)
        s.compute(kname, has_main, tailcfg)
        s.loader(kname, has_main, tailcfg)

    def desc(s, kname):
        return f""".amdhsa_kernel {kname}
  .amdhsa_next_free_vgpr 256
  .amdhsa_next_free_sgpr 102
  .amdhsa_accum_offset 256
  .amdhsa_group_segment_fixed_size 0
  .amdhsa_kernarg_size 104
  .amdhsa_user_sgpr_count 2
  .amdhsa_user_sgpr_kernarg_segment_ptr 1
  .amdhsa_system_sgpr_workgroup_id_x 1
.end_amdhsa_kernel"""

    def build(s):
        def prog(l):
            v = 0
            for i, c in enumerate(l): v |= c << (4 * i)
            return v
        hdr = []
        K = NAME + "_kernel"
        if s.mode == "fused":
            hdr.append("; @launch grid=(256,1,1) block=(512,1,1) lds=163840")
            s.kernel(K, (prog([1, 3, 9, 11, 5, 6]), prog([10, 1, 3, 5, 12, 6])), True, dict(sync=True, kst=48, n=16))
            ks = [K]
        else:
            K2 = "oproj_kernel"
            hdr.append(f"; @launch kernel={K} grid=(256,1,1) block=(512,1,1) lds=163840")
            hdr.append(f"; @launch kernel={K2} grid=(256,1,1) block=(512,1,1) lds=163840")
            s.kernel(K, (prog([1, 3, 9, 11]), prog([10, 1, 3, 12])), True, None)
            st = s.stamps; s.stamps = False
            s.kernel(K2, (6, 6), False, dict(sync=False, kst=0, n=64))
            s.stamps = st
            ks = [K, K2]
        if s.o.get("nocomp"):
            s.a.l = [x for x in s.a.l if not re.match(r"\s+(v_mfma|ds_read|v_exp|v_cvt_pk|v_max3|s_cbranch_vccnz)", x)]
        if s.o.get("nostore"):
            s.a.l = [x for x in s.a.l if not re.match(r"\s+buffer_store_dwordx4", x)]
        if s.o.get("nomfma"):
            s.a.l = [x for x in s.a.l if not re.match(r"\s+(v_mfma|v_exp|v_cvt_pk|v_max3|s_cbranch_vccnz)", x)]
        if s.o.get("nolds"):
            s.a.l = [x for x in s.a.l if not re.match(r"\s+(ds_read|s_cbranch_vccnz)", x)]
        if s.o.get("noload"):
            s.a.l = [x for x in s.a.l if not (re.match(r"\s+buffer_load.* lds", x) or "s_cbranch_vccnz" in x)]
        out = hdr + ['.amdgcn_target "amdgcn-amd-amdhsa--gfx950"', ".text"] + s.a.l
        out += ['.section .rodata,"a"']
        for k in ks: out += [".p2align 6", s.desc(k)]
        return "\n".join(out) + "\n"

if __name__ == "__main__":
    import argparse, json
    ap = argparse.ArgumentParser()
    ap.add_argument("-o", default="k.s"); ap.add_argument("--mode", default="fused"); ap.add_argument("--stamps", action="store_true")
    ap.add_argument("--opts", default="{}")
    A = ap.parse_args()
    open(A.o, "w").write(Gen(A.mode, A.stamps, json.loads(A.opts)).build())
```

```python
import sys, re, math
NAME = "concat_heads__mha_block_cached__gqa_block_cached__near_ridge"

SLOT = 40960
NSLOT = 4
WS_Q = 0x0
WS_O = 0x2000000
WS_P = 0x4000000
WS_T = 0x8000000
WS_SIZE = 308281344
THR = 8.0
QSCALE = math.log2(math.e) / math.sqrt(128.0)

import struct
def f32(x): return "0x%08x" % struct.unpack("<I", struct.pack("<f", x))[0]

class Asm:
    def __init__(s): s.l = []; s.uid = 0
    def __call__(s, t):
        for x in t.split("\n"):
            x = x.strip()
            if x: s.l.append("    " + x)
    def lab(s, n): s.l.append(n + ":")
    def c(s, t): s.l.append("    ; " + t)
    def new(s, p): s.uid += 1; return f"{p}_{s.uid}"

class LQ:
    def __init__(s, a): s.a = a; s.q = []
    def rd(s, ins, tag):
        s.a(ins); s.q.append(tag); assert len(s.q) <= 15, "lgkm overflow"
    def need(s, tag):
        idx = [i for i, t in enumerate(s.q) if t == tag]
        if not idx: return
        n = len(s.q) - 1 - idx[-1]
        s.a(f"s_waitcnt lgkmcnt({n})"); s.q = s.q[idx[-1] + 1:]
    def drain(s):
        s.a("s_waitcnt lgkmcnt(0)"); s.q = []

def vr(b, n=4): return f"v[{b}:{b+n-1}]"
def mfma(d, a_, b_, c): return f"v_mfma_f32_16x16x32_bf16 {vr(d)}, {vr(a_)}, {vr(b_)}, {c if isinstance(c, str) else vr(c)}"

sWG, sWV, sP, sG, sMB, sHS, sROT, sPM = "s2", "s3", "s4", "s5", "s6", "s7", "s8", "s9"
sPROG, sSEL = "s10", "s11"
SA, SB, SK, SV, SWS, SOUT, SDBG = 28, 32, 36, 40, 44, 48, 52
def srd(b): return f"s[{b}:{b+3}]"
sSLOT, sI, sN, sT0, sT1, sT2, sCODE = "s56", "s57", "s58", "s59", "s60", "s61", "s62"
sFIRST, sKST, sMASK, sROFF, sBA, sMA, sJA, sBB, sMBm, sJB, sPOLL, sA, sB_, sM0, sK0, sK1, sTILE = \
    "s63", "s64", "s65", "s66", "s67", "s68", "s69", "s70", "s71", "s72", "s73", "s74", "s75", "s76", "s77", "s78", "s79"
sDL, sPEND, sFOFF, sFSH, sHEAD = "s63", "s64", "s65", "s66", "s67"
sSTAMP = 80

vLANE, vA0, vA1, vA2 = 0, 1, 2, 3
vT = 4
vONES = 8
vCI = 12
vL = 24
vRING = 36
vM = 52
vS = 64
vACC = 112
vQ = 208
def acc(nt, mt): return vACC + (nt * 3 + mt) * 4
def qreg(mt, ks): return vQ + (mt * 4 + ks) * 4

class Gen:
    def __init__(s, mode="fused", stamps=False, opts=None):
        s.mode = mode; s.stamps = stamps; s.a = Asm(); s.o = opts or {}
        s.nst = 0
        global WS_Q, WS_O, WS_P
        base = int(s.o.get("wsbase", 0))
        WS_Q = base; WS_O = base + 0x1000000; WS_P = base + 0x3000000
        if base == 0: WS_O = 0x2000000; WS_P = 0x4000000

    def stamp(s):
        if not s.stamps: return
        a = s.a
        a("s_memrealtime s[100:101]\ns_waitcnt lgkmcnt(0)")
        for i in range(sSTAMP + 15, sSTAMP, -1): a(f"s_mov_b32 s{i}, s{i-1}")
        a(f"s_mov_b32 s{sSTAMP}, s100")

    def stamp_dump(s):
        if not s.stamps: return
        a = s.a
        if "dbgwg" in s.o:
            L = a.new("L_sd")
            a(f"s_cmp_lg_u32 {sWG}, {s.o['dbgwg']}\ns_cbranch_scc1 {L}\ns_cmp_lg_u32 {sWV}, 0\ns_cbranch_scc1 {L}")
            a(f"s_memtime s[100:101]\ns_waitcnt lgkmcnt(0)\ns_sub_u32 s{sSTAMP+15}, s100, s99")
            a(f"v_mov_b32 v{vT}, 0")
            for i in range(16):
                if i < 15: a(f"s_sub_u32 {sT0}, s{sSTAMP}, s{sSTAMP+i}")
                else: a(f"s_mov_b32 {sT0}, s{sSTAMP+i}")
                a(f"v_mov_b32 v{vT+1}, {sT0}\nbuffer_store_dword v{vT+1}, v{vT}, {srd(SDBG)}, 0 offen offset:{4*i}\ns_nop 1")
            a("s_waitcnt vmcnt(0)")
            a.lab(L)
            return
        a(f"s_lshl_b32 {sT0}, {sWG}, 3\ns_add_u32 {sT0}, {sT0}, {sWV}\ns_lshl_b32 {sT0}, {sT0}, 6\ns_add_u32 {sT0}, {sT0}, {WS_T}")
        a(f"v_mov_b32 v{vT}, 0")
        for i in range(16):
            a(f"v_mov_b32 v{vT+1}, s{sSTAMP+i}\nbuffer_store_dword v{vT+1}, v{vT}, {srd(SWS)}, {sT0} offen offset:{4*i}\ns_nop 1")
        a("s_waitcnt vmcnt(0)")

    def setup(s, kname, progs):
        a = s.a
        a.l.append(f".globl {kname}\n.p2align 8\n.type {kname},@function\n{kname}:")
        a(f"""s_cmp_ge_u32 {sWG}, 256
        s_cbranch_scc1 {kname}_end
        s_and_b32 {sT0}, {sWG}, 7
        s_lshr_b32 {sP}, {sT0}, 2
        s_mul_i32 {sT1}, {sP}, 40
        s_add_u32 s60, s0, {sT1}
        s_addc_u32 s61, s1, 0
        s_load_dwordx8 s[12:19], s[60:61], 0
        s_load_dwordx2 s[20:21], s[60:61], 32
        s_load_dwordx2 s[22:23], s[0:1], 96
        s_load_dwordx4 s[24:27], s[0:1], 80
        v_lshrrev_b32 v1, 6, v0
        v_and_b32 v{vLANE}, 63, v0
        v_readfirstlane_b32 {sWV}, v1
        s_bfe_u32 {sG}, {sWG}, 0x10003
        s_lshr_b32 {sI}, {sWG}, 4
        s_and_b32 {sN}, {sI}, 3
        s_lshr_b32 {sI}, {sI}, 2
        s_add_u32 {sROT}, {sN}, {sI}
        s_and_b32 {sROT}, {sROT}, 3
        s_and_b32 {sMB}, {sT0}, 1
        s_lshl_b32 {sMB}, {sMB}, 2
        s_add_u32 {sMB}, {sMB}, {sN}
        s_bfe_u32 {sHS}, {sT0}, 0x10001
        s_lshl_b32 {sHS}, {sHS}, 2
        s_add_u32 {sHS}, {sHS}, {sI}
        s_lshl_b32 {sPM}, {sP}, 3
        s_add_u32 {sPM}, {sPM}, {sMB}
        s_cmp_eq_u32 {sG}, 0
        s_cselect_b32 {sPROG}, {hex(progs[0])}, {hex(progs[1])}""" if progs[0] == progs[1] else f"""s_cmp_ge_u32 {sWG}, 256
        s_cbranch_scc1 {kname}_end
        s_and_b32 {sT0}, {sWG}, 7
        s_lshr_b32 {sP}, {sT0}, 2
        s_mul_i32 {sT1}, {sP}, 40
        s_add_u32 s60, s0, {sT1}
        s_addc_u32 s61, s1, 0
        s_load_dwordx8 s[12:19], s[60:61], 0
        s_load_dwordx2 s[20:21], s[60:61], 32
        s_load_dwordx2 s[22:23], s[0:1], 96
        s_load_dwordx4 s[24:27], s[0:1], 80
        v_lshrrev_b32 v1, 6, v0
        v_and_b32 v{vLANE}, 63, v0
        v_readfirstlane_b32 {sWV}, v1
        s_bfe_u32 {sG}, {sWG}, 0x10003
        s_lshr_b32 {sI}, {sWG}, 4
        s_and_b32 {sN}, {sI}, 3
        s_lshr_b32 {sI}, {sI}, 2
        s_add_u32 {sROT}, {sN}, {sI}
        s_and_b32 {sROT}, {sROT}, 3
        s_and_b32 {sMB}, {sT0}, 1
        s_lshl_b32 {sMB}, {sMB}, 2
        s_add_u32 {sMB}, {sMB}, {sN}
        s_bfe_u32 {sHS}, {sT0}, 0x10001
        s_lshl_b32 {sHS}, {sHS}, 2
        s_add_u32 {sHS}, {sHS}, {sI}
        s_lshl_b32 {sPM}, {sP}, 3
        s_add_u32 {sPM}, {sPM}, {sMB}
        s_mov_b32 {sPROG}, {hex(progs[0])}
        s_cmp_eq_u32 {sG}, 0
        s_cselect_b32 {sPROG}, {sPROG}, {hex(progs[1])}""")
        if "progs" in s.o and kname.startswith("concat"):
            a(f"s_mov_b32 {sPROG}, {s.o['progs'][0]}\ns_cmp_eq_u32 {sG}, 0\ns_cselect_b32 {sPROG}, {sPROG}, {s.o['progs'][1]}")
            a(f"s_cmp_eq_u32 {sPROG}, 0\ns_cbranch_scc1 {kname}_end")
        a(f"s_mov_b32 {sSLOT}, 0\ns_waitcnt lgkmcnt(0)")
        for (b, lo, size) in [(SA, 12, 3145728), (SB, 18, 8388608), (SK, 14, 67108864), (SV, 16, 67108864),
                              (SWS, 22, WS_SIZE), (SOUT, 24, 6291456), (SDBG, 26, 256)]:
            a(f"s_mov_b32 s{b}, s{lo}\ns_mov_b32 s{b+1}, s{lo+1}\ns_mov_b32 s{b+2}, {size}\ns_mov_b32 s{b+3}, 0x20000")
        if s.stamps:
            for i in range(16): a(f"s_mov_b32 s{sSTAMP+i}, 0")
            a("s_memtime s[100:101]\ns_waitcnt lgkmcnt(0)\ns_mov_b32 s99, s100")
        s.stamp()
        a(f"s_cmp_ge_u32 {sWV}, 4\ns_cbranch_scc1 {kname}_loader")

    def next_slot(s, reg):
        s.a(f"s_add_u32 {reg}, {reg}, {SLOT}\ns_cmp_eq_u32 {reg}, {SLOT*NSLOT}\ns_cselect_b32 {reg}, 0, {reg}")

    def decode(s):
        s.a(f"s_and_b32 {sCODE}, {sPROG}, 7\ns_bfe_u32 {sSEL}, {sPROG}, 0x10003\ns_lshr_b32 {sPROG}, {sPROG}, 4")

    def head_of_sel(s, dst):
        s.a(f"s_lshl_b32 {dst}, {sSEL}, 1\ns_add_u32 {dst}, {dst}, {sG}\ns_lshl_b32 {dst}, {dst}, 3\ns_add_u32 {dst}, {dst}, {sHS}")

    def poll(s, off_reg, mask_reg, vtmp, vzero):
        a = s.a; L = a.new("L_poll"); D = a.new("L_polld")
        a(f"s_mov_b32 {sT2}, 0x40000")
        a.lab(L)
        a(f"""buffer_load_dword v{vtmp}, v{vzero}, {srd(SDBG)}, {off_reg} offen sc1
        s_waitcnt vmcnt(0)
        v_readfirstlane_b32 {sT0}, v{vtmp}
        s_and_b32 {sT0}, {sT0}, {mask_reg}
        s_cmp_eq_u32 {sT0}, {mask_reg}
        s_cbranch_scc1 {D}
        s_sleep 4
        s_sub_u32 {sT2}, {sT2}, 1
        s_cmp_lg_u32 {sT2}, 0
        s_cbranch_scc1 {L}""")
        a.lab(D)

    def unit_end(s, n):
        a = s.a; L = a.new("L_ue")
        s.next_slot(sSLOT)
        a(f"s_cmp_eq_u32 {sFIRST}, 0\ns_mov_b32 {sFIRST}, 0\ns_cbranch_scc0 {L}\ns_waitcnt vmcnt({n})\ns_barrier")
        a.lab(L)

    def loader_gemm_loop(s, kname, tail, polls):
        a = s.a; L = a.new("L_lg")
        vRA, vRB = 10, 11
        a(f"s_mov_b32 {sI}, 0")
        a.lab(L)
        if polls:
            S = a.new("L_nop")
            a(f"s_and_b32 {sT0}, {sI}, 7\ns_or_b32 {sT0}, {sT0}, {sPOLL}\ns_cmp_lg_u32 {sT0}, 0\ns_cbranch_scc1 {S}")
            a(f"""s_add_u32 {sT0}, {sKST}, {sI}
            s_lshr_b32 {sT0}, {sT0}, 3
            s_lshr_b32 {sT1}, {sT0}, 2
            s_lshl_b32 {sB_}, 0x01010101, {sT1}
            s_and_b32 {sT0}, {sT0}, 3
            s_lshl_b32 {sA}, {sPM}, 2
            s_add_u32 {sA}, {sA}, {sT0}
            s_lshl_b32 {sA}, {sA}, 2""")
            s.poll(sA, sB_, 14, 15)
            a.lab(S)
        a(f"""s_add_u32 {sT0}, {sI}, {sROFF}
        s_and_b32 {sT0}, {sT0}, {sMASK}
        s_andn2_b32 {sT1}, {sI}, {sMASK}
        s_add_u32 {sT0}, {sT0}, {sT1}
        s_add_u32 {sT0}, {sT0}, {sKST}
        s_mul_i32 {sA}, {sT0}, {sMA}
        s_add_u32 {sA}, {sA}, {sBA}
        s_mul_i32 {sB_}, {sT0}, {sMBm}
        s_add_u32 {sB_}, {sB_}, {sBB}
        s_lshl_b32 {sT1}, {sWV}, 10
        s_add_u32 {sM0}, {sSLOT}, {sT1}""")
        fa = s.o.get("fa", "sc1"); fb = s.o.get("fb", "")
        for j in range(6):
            a(f"s_add_u32 m0, {sM0}, {j*4096}")
            if j: a(f"s_add_u32 {sA}, {sA}, {sJA}")
            else: a("s_nop 0")
            a(f"buffer_load_dwordx4 v{vRA}, {srd(SA)}, {sA} offen {fa} lds")
        if tail:
            for oo in range(2):
                a(f"s_add_u32 m0, {sM0}, {24576 + oo*4096}")
                if oo: a(f"s_add_u32 {sB_}, {sB_}, {sJB}")
                else: a("s_nop 0")
                a(f"buffer_load_dwordx4 v{vRB}, {srd(SB)}, {sB_} offen {fb} lds")
            n = 8
        else:
            a(f"s_add_u32 {sM0}, {sM0}, {sT1}")
            for oo in range(2):
                for hf in range(2):
                    a(f"s_add_u32 m0, {sM0}, {24576 + oo*8192 + hf*(1024-128)}")
                    if oo and not hf: a(f"s_add_u32 {sB_}, {sB_}, {sJB}")
                    else: a("s_nop 0")
                    a(f"buffer_load_dwordx4 v{vRB}, {srd(SB)}, {sB_} offen offset:{hf*128} {fb} lds")
            n = 10
        s.unit_end(n)
        a(f"s_add_u32 {sI}, {sI}, 1\ns_cmp_lt_u32 {sI}, {sN}\ns_cbranch_scc1 {L}")

    def loader_o_params(s, kst, n, tail):
        a = s.a
        a(f"""s_mov_b32 s{SA}, s22
        s_mov_b32 s{SA+1}, s23
        s_mov_b32 s{SA+2}, {WS_SIZE}
        s_mov_b32 s{SB}, s20
        s_mov_b32 s{SB+1}, s21
        v_mov_b32 v10, v8
        v_mov_b32 v11, v9
        s_mul_i32 {sBA}, {sPM}, {32*49152}
        s_add_u32 {sBA}, {sBA}, {WS_O}
        s_mov_b32 {sMA}, 24576
        s_mov_b32 {sJA}, 4096
        s_lshl_b32 {sBB}, {sHS}, 8
        s_mov_b32 {sMBm}, {64*2048}
        s_mov_b32 {sJB}, {32*2048}
        s_mov_b32 {sMASK}, 7
        s_lshl_b32 {sROFF}, {sROT}, 1
        s_mov_b32 {sN}, {n}
        s_mov_b32 {sPOLL}, 0""")
        if isinstance(kst, int): a(f"s_mov_b32 {sKST}, {kst}")
        else: a(kst)
        if tail: a(f"s_lshl_b32 {sT0}, {sG}, 7\ns_add_u32 {sBB}, {sBB}, {sT0}")

    def loader(s, kname, has_main, tailcfg):
        a = s.a
        a.lab(f"{kname}_loader")
        a(f"s_sub_u32 {sWV}, {sWV}, 4\ns_mov_b32 {sFIRST}, 1")
        a(f"""v_lshrrev_b32 v1, 5, v0
        v_lshlrev_b32 v1, 6, v1
        v_bfe_u32 v2, v0, 2, 3
        v_and_b32 v3, 3, v0
        s_lshl_b32 {sT0}, {sWV}, 3
        v_add_u32 v4, {sT0}, v2
        v_mov_b32 v15, 0""")
        a(f"""v_lshrrev_b32 v5, 2, v4
        v_sub_u32 v5, 0, v5
        v_and_b32 v5, 3, v5
        v_xor_b32 v5, v5, v3
        v_lshlrev_b32 v5, 4, v5
        v_lshlrev_b32 v6, 11, v4
        v_add3_u32 v6, v6, v5, v1""")
        a(f"""s_and_b32 {sT0}, {sWV}, 1
        s_lshl_b32 {sT1}, {sT0}, 1
        v_xor_b32 v5, {sT1}, v3
        v_lshlrev_b32 v5, 4, v5
        v_add_u32 v5, v5, v1
        v_lshl_add_u32 v7, v4, 13, v5
        v_lshl_add_u32 v9, v4, 11, v5
        s_lshl_b32 {sT1}, {sWV}, 10
        v_lshlrev_b32 v8, 4, v0
        v_add_u32 v8, {sT1}, v8""")
        a(f"""v_xor_b32 v5, {sT0}, v3
        v_lshlrev_b32 v5, 4, v5
        v_add_u32 v5, v5, v1
        v_lshl_add_u32 v12, v4, 8, v5
        v_lshrrev_b32 v5, 2, v2
        v_lshlrev_b32 v5, 1, v5
        v_xor_b32 v5, v5, v3
        v_lshlrev_b32 v5, 4, v5
        v_add_u32 v5, v5, v1
        v_lshl_add_u32 v13, v4, 8, v5
        v_mov_b32 v10, v6
        v_mov_b32 v11, v7""")
        LN = f"{kname}_lnext"; LG = f"{kname}_lgemm"; LA = f"{kname}_latt"; LO = f"{kname}_lomid"; LT = f"{kname}_ltail"; LE = f"{kname}_lend"
        a.lab(LN)
        s.decode()
        if tailcfg is not None:
            a(f"s_cmp_eq_u32 {sCODE}, 6\ns_cbranch_scc1 {LT}")
        if has_main:
            a(f"s_cmp_eq_u32 {sCODE}, 0\ns_cbranch_scc1 {LE}")
            if s.mode == "fused": a(f"s_cmp_eq_u32 {sCODE}, 5\ns_cbranch_scc1 {LO}")
            a(f"s_cmp_ge_u32 {sCODE}, 3\ns_cbranch_scc1 {LA}")
            s.head_of_sel(sT0)
            a(f"""s_mul_i32 {sBA}, {sMB}, {192*2048}
            s_mov_b32 {sMA}, 128
            s_mov_b32 {sJA}, 65536
            s_lshl_b32 {sBB}, {sT0}, 8
            s_mov_b32 {sMBm}, {64*8192}
            s_mov_b32 {sJB}, {32*8192}
            s_mov_b32 {sMASK}, 15
            s_lshl_b32 {sROFF}, {sROT}, 2
            s_lshl_b32 {sT0}, {sG}, 1
            s_add_u32 {sROFF}, {sROFF}, {sT0}
            s_mov_b32 {sKST}, 0
            s_mov_b32 {sN}, 16
            s_mov_b32 {sPOLL}, 1""")
            a.lab(LG)
            s.loader_gemm_loop(kname, False, s.mode == "fused")
            a(f"s_branch {LN}")
            if s.mode == "fused":
                a.lab(LO)
                s.loader_o_params(f"s_sub_u32 {sT0}, 1, {sG}\ns_mul_i32 {sKST}, {sT0}, 24", 24, False)
                a(f"s_branch {LG}")
            a.lab(LA)
            s.head_of_sel(sT0)
            a(f"""s_lshl_b32 {sT1}, {sMB}, 6
            s_add_u32 {sT0}, {sT0}, {sT1}
            s_lshl_b32 {sK0}, {sT0}, 17
            s_lshr_b32 {sTILE}, {sWG}, {s.o.get("rotsh", 4)}
            s_and_b32 {sTILE}, {sTILE}, 15
            s_lshl_b32 {sTILE}, {sTILE}, 13
            s_mov_b32 {sI}, 0""")
            if not s.o.get("krot", True): a(f"s_mov_b32 {sTILE}, 0")
            fk = s.o.get("fk", "nt")
            def kv(sr, vo, base):
                a(f"s_add_u32 {sA}, {sK0}, {sTILE}\ns_add_u32 {sB_}, {sA}, {4194304}")
                for it in range(2):
                    for hf in range(2):
                        a(f"s_add_u32 m0, {sM0}, {base + it*8192 + hf*(1024-128)}\ns_nop 0")
                        a(f"buffer_load_dwordx4 v{vo}, {srd(sr)}, {sA if it == 0 else sB_} offen offset:{hf*128} {fk} lds")
            def m0base(): a(f"s_lshl_b32 {sT1}, {sWV}, 11\ns_add_u32 {sM0}, {sSLOT}, {sT1}")
            m0base(); kv(SK, 12, 0); s.unit_end(4)
            L = a.new("L_la"); a.lab(L)
            m0base()
            a(f"s_mov_b32 {sK1}, {sTILE}\ns_add_u32 {sTILE}, {sTILE}, 8192\ns_and_b32 {sTILE}, {sTILE}, 0x1ffff")
            kv(SK, 12, 0)
            a(f"s_mov_b32 {sT0}, {sTILE}\ns_mov_b32 {sTILE}, {sK1}")
            a(f"s_mov_b32 {sK1}, {sT0}")
            kv(SV, 13, 16384)
            a(f"s_mov_b32 {sTILE}, {sK1}")
            s.unit_end(8)
            a(f"s_add_u32 {sI}, {sI}, 1\ns_cmp_lt_u32 {sI}, 15\ns_cbranch_scc1 {L}")
            m0base(); kv(SV, 13, 16384); s.unit_end(4)
            a(f"s_branch {LN}")
        if tailcfg is not None:
            a.lab(LT)
            if tailcfg["sync"]:
                a(f"s_waitcnt vmcnt(0)\ns_barrier\ns_barrier\ns_mov_b32 {sFIRST}, 1")
            s.loader_o_params(tailcfg["kst"], tailcfg["n"], True)
            s.loader_gemm_loop(kname, True, tailcfg["sync"])
        a.lab(LE)
        a("s_waitcnt vmcnt(0)\ns_barrier")
        s.stamp()
        if s.stamps: a(f"s_add_u32 {sWV}, {sWV}, 4")
        s.stamp_dump()
        a("s_endpgm")

    def adv_addr(s):
        a = s.a
        a(f"s_mov_b32 {sDL}, {sSLOT}")
        s.next_slot(sSLOT)
        a(f"s_sub_u32 {sDL}, {sSLOT}, {sDL}")
    def adv_apply(s):
        for r in (vA0, vA1, vA2): s.a(f"v_add_u32 v{r}, {sDL}, v{r}")

    def pack_acc(s, nts, scale, dst):
        a = s.a
        for mt in range(3):
            for pr in range(nts // 2):
                d = dst(mt, pr); x = acc(2 * pr, mt); y = acc(2 * pr + 1, mt)
                if scale is not None:
                    for r in range(4): a(f"v_mul_f32 v{x+r}, {scale(mt)}, v{x+r}")
                    for r in range(4): a(f"v_mul_f32 v{y+r}, {scale(mt)}, v{y+r}")
                a(f"v_cvt_pk_bf16_f32 v{d}, v{x}, v{x+1}\nv_cvt_pk_bf16_f32 v{d+2}, v{y}, v{y+1}")
                a(f"v_cvt_pk_bf16_f32 v{d+1}, v{x+2}, v{x+3}\nv_cvt_pk_bf16_f32 v{d+3}, v{y+2}, v{y+3}")
                a(f"s_nop 0\nv_permlane16_swap_b32 v{d}, v{d+2}\nv_permlane16_swap_b32 v{d+1}, v{d+3}")

    def signal(s):
        a = s.a; L = a.new("L_sig")
        a(f"""s_cmp_lg_u32 {sWV}, 0
        s_cbranch_scc1 {L}
        s_cmp_eq_u32 {sPEND}, 0
        s_cbranch_scc1 {L}
        s_lshl_b32 {sT0}, {sPEND}, {sFSH}
        v_mov_b32 v{vT}, {sT0}
        v_mov_b32 v{vT+1}, 0
        s_mov_b64 exec, 1
        buffer_atomic_or v{vT}, v{vT+1}, {srd(SDBG)}, {sFOFF} offen sc1
        s_mov_b64 exec, -1""")
        a.lab(L)
        a(f"s_mov_b32 {sPEND}, 0")

    def gemm_addr(s, tail):
        a = s.a
        a(f"""v_bfe_u32 v{vT}, v0, 3, 1
        s_mul_i32 {sT0}, {sWV}, 6
        v_add_u32 v{vT}, {sT0}, v{vT}
        v_lshlrev_b32 v{vT}, 10, v{vT}
        v_and_b32 v{vT+1}, 7, v0
        v_lshl_add_u32 v{vT}, v{vT+1}, 6, v{vT}
        v_lshrrev_b32 v{vT+1}, 2, v0
        v_sub_u32 v{vT+1}, 0, v{vT+1}
        v_and_b32 v{vT+1}, 3, v{vT+1}
        v_lshrrev_b32 v{vT+2}, 4, v0
        v_xor_b32 v{vT+1}, v{vT+1}, v{vT+2}
        v_lshl_add_u32 v{vT}, v{vT+1}, 4, v{vT}
        v_add_u32 v{vA0}, {sSLOT}, v{vT}""")
        sh = 10 if tail else 11
        a(f"""v_lshlrev_b32 v{vT}, {sh}, v{vT+2}
        v_bfe_u32 v{vT+1}, v0, 2, 2
        v_lshl_add_u32 v{vT}, v{vT+1}, 6, v{vT}
        v_and_b32 v{vT+1}, 1, v{vT+2}
        v_lshl_add_u32 v{vT}, v{vT+1}, 5, v{vT}
        v_and_b32 v{vT+1}, 3, v0
        v_lshl_add_u32 v{vT}, v{vT+1}, 3, v{vT}
        v_add_u32 v{vT}, 24576, v{vT}
        v_xor_b32 v{vT+1}, 32, v{vT}
        v_add_u32 v{vA1}, {sSLOT}, v{vT}
        v_add_u32 v{vA2}, {sSLOT}, v{vT+1}""")

    def gemm_loop(s, tail, hook):
        a = s.a; q = LQ(a)
        NT = 4 if tail else 8
        R = 8; LA = s.o.get("gla", 5) if not tail else 4
        vX = vS; vW = vS + 24
        wreg = [88, 92, 96, 100, 104, 108, 36, 40]
        NF = 2 * NT
        kso = 4096 if tail else 8192
        def rdW(f):
            ks, nt = (f % NF) // NT, f % NT
            r = wreg[f % R]; ad = vA1 if nt % 2 == 0 else vA2
            for sec in range(2):
                q.rd(f"ds_read_b64_tr_b16 {vr(r + 2*sec, 2)}, v{ad} offset:{ks*kso + (nt>>1)*512 + sec*256}", ("W", f % NF))
        def rdX(ks, mt):
            q.rd(f"ds_read_b128 {vr(vX + ks*12 + mt*4)}, v{vA0} offset:{mt*2048 + ks*512}", ("X", ks, mt))
        def grp(f, reads):
            ks, nt = f // NT, f % NT
            q.need(("W", f))
            for mt in range(3):
                q.need(("X", ks, mt))
                a(mfma(acc(nt, mt), wreg[f % R], vX + ks*12 + mt*4, acc(nt, mt)))
                if mt < len(reads): reads[mt]()
            for r in reads[3:]: r()
        a("s_barrier")
        s.stamp()
        for mt in range(3): rdX(0, mt)
        for f in range(LA): rdW(f)
        a(f"s_mov_b32 {sI}, 1")
        q0 = list(q.q)
        L = a.new("L_gl"); F = a.new("L_gf"); B = a.new("L_gb"); H = a.new("L_gh")
        a.lab(L)
        cut = NF - LA
        for f in range(cut):
            reads = [lambda f=f: rdW(f + LA)]
            if f < 3: reads.append(lambda f=f: rdX(1, f))
            if f == cut - 1: reads.append(lambda: s.adv_addr())
            grp(f, reads)
        qcut = list(q.q)
        a(f"s_cmp_eq_u32 {sI}, {sN}\ns_cbranch_scc1 {F}")
        if hook: a(f"s_cmp_eq_u32 {sI}, {hook[0]}\ns_cbranch_scc1 {H}")
        a("s_barrier")
        a.lab(B)
        s.adv_apply()
        a(f"s_add_u32 {sI}, {sI}, 1")
        for f in range(cut, NF):
            reads = []
            if f == cut: reads = [lambda: rdX(0, 0), lambda: rdX(0, 1), lambda: rdX(0, 2)]
            reads.append(lambda f=f: rdW(f + LA))
            grp(f, reads)
        assert q.q == q0, (q.q, q0)
        a(f"s_branch {L}")
        if hook:
            a.lab(H); hook[1](); a(f"s_branch {B}")
        a.lab(F)
        q.q = qcut
        for f in range(cut, NF): grp(f, [])
        a("s_nop 7")
        s.stamp()

    def att(s):
        a = s.a; q = LQ(a)
        def S(par, qt, kt=0): return vS + par * 24 + qt * 8 + kt * 4
        ring = lambda f: vRING + (f % 4) * 4
        def rd(f):
            f %= 16
            if f < 8:
                q.rd(f"ds_read_b128 {vr(ring(f))}, v{vA0} offset:{(f >> 2)*4096 + (f & 3)*512}", f)
            else:
                dt = f - 8; ad = vA1 if dt % 2 == 0 else vA2
                for sec in range(2):
                    q.rd(f"ds_read_b64_tr_b16 {vr(ring(f) + 2*sec, 2)}, v{ad} offset:{sec*4096 + (dt >> 1)*512}", f)
        a(f"""v_lshrrev_b32 v{vT+2}, 4, v0
        s_lshr_b32 {sT0}, {sWV}, 1
        s_lshl_b32 {sT0}, {sT0}, 13
        s_add_u32 {sT0}, {sT0}, {sSLOT}
        v_bfe_u32 v{vT}, v0, 3, 1
        v_lshrrev_b32 v{vT+1}, 1, v{vT+2}
        v_and_b32 v{vT+3}, 1, v{vT+2}
        v_lshl_or_b32 v{vM}, v{vT+3}, 1, v{vT+1}
        v_xor_b32 v{vM}, v{vM}, v{vT}
        v_lshlrev_b32 v{vM}, 4, v{vM}
        v_lshl_add_u32 v{vM}, v{vT}, 11, v{vM}
        v_and_b32 v{vT}, 7, v0
        v_lshl_add_u32 v{vM}, v{vT}, 6, v{vM}
        v_add_u32 v{vA0}, {sT0}, v{vM}
        v_lshlrev_b32 v{vM}, 11, v{vT+1}
        v_bfe_u32 v{vT}, v0, 2, 3
        v_lshl_add_u32 v{vM}, v{vT}, 6, v{vM}
        v_lshl_add_u32 v{vM}, v{vT+3}, 5, v{vM}
        v_and_b32 v{vT}, 3, v0
        v_lshl_add_u32 v{vM}, v{vT}, 3, v{vM}
        v_add_u32 v{vM}, 16384, v{vM}
        v_xor_b32 v{vT}, 32, v{vM}
        v_add_u32 v{vA1}, {sT0}, v{vM}
        v_add_u32 v{vA2}, {sT0}, v{vT}""")
        for r in range(4): a(f"v_mov_b32 v{vONES+r}, 0x3f803f80")
        for r in range(12): a(f"v_mov_b32 v{vL+r}, 0")
        for r in range(96): a(f"v_mov_b32 v{vACC+r}, 0")
        a("s_waitcnt vmcnt(0)" if True else "")
        a("s_barrier")
        s.stamp()
        def qk(par, f, c0, fill):
            kt, ks = f >> 2, f & 3
            q.need(f)
            for qt in range(3):
                d = S(par, qt, kt)
                a(mfma(d, ring(f), qreg(qt, ks), (c0(qt) if ks == 0 else d)))
                for x in fill[qt]: x()
        def rowmax(par, qt, dst, tmp):
            b = S(par, qt)
            a(f"v_max3_f32 v{dst}, v{b}, v{b+1}, v{b+2}\nv_max3_f32 v{dst}, v{dst}, v{b+3}, v{b+4}\nv_max3_f32 v{dst}, v{dst}, v{b+5}, v{b+6}\nv_max_f32 v{dst}, v{dst}, v{b+7}")
            a(f"v_mov_b32 v{tmp}, v{dst}\ns_nop 1\nv_permlane16_swap_b32 v{dst}, v{tmp}\ns_nop 1\nv_max_f32 v{dst}, v{dst}, v{tmp}")
            a(f"v_mov_b32 v{tmp}, v{dst}\ns_nop 1\nv_permlane32_swap_b32 v{dst}, v{tmp}\ns_nop 1\nv_max_f32 v{dst}, v{dst}, v{tmp}")
        for f in range(3): rd(f)
        for f in range(8):
            qk(0, f, lambda qt: "0", [[lambda f=f: rd(f + 3)] if f + 3 < 8 else [], [], []])
        s.adv_addr()
        a("s_barrier")
        s.adv_apply()
        for f in range(3): rd(f)
        a("s_nop 1")
        for qt in range(3):
            rowmax(0, qt, vM + qt, vM + 4)
            for r in range(8): a(f"v_sub_f32 v{S(0,qt)+r}, v{S(0,qt)+r}, v{vM+qt}")
            for r in range(4): a(f"v_sub_f32 v{vCI+qt*4+r}, 0, v{vM+qt}")
        a(f"s_mov_b32 {sI}, 0")
        q0 = list(q.q)
        def ex(par, i): return lambda: a(f"v_exp_f32 v{vS+par*24+i}, v{vS+par*24+i}")
        def cv(par, pr):
            qt, k = pr // 4, pr % 4; b = S(par, qt)
            return lambda: a(f"v_cvt_pk_bf16_f32 v{b+k}, v{b+2*k}, v{b+2*k+1}")
        def pv(par, f, fill):
            dt = f - 8
            q.need(f)
            for qt in range(3):
                a(mfma(acc(dt, qt), ring(f), S(par, qt), acc(dt, qt)))
                for x in fill[qt]: x()
        def ones(par, qt): a(mfma(vL + qt*4, vONES, S(par, qt), vL + qt*4))
        rare = []
        def step(par):
            nx = par ^ 1
            for f in range(8):
                fill = []
                for qt in range(3):
                    i = f * 3 + qt; x = []
                    if qt == 0: x.append(lambda f=f: rd(f + 3))
                    x.append(ex(par, i))
                    if i >= 2 and i % 2 == 0: x.append(cv(par, i // 2 - 1))
                    fill.append(x)
                qk(nx, f, lambda qt: vCI + qt*4, fill)
            ones(par, 0); cv(par, 11)(); ones(par, 1); a("s_nop 0"); ones(par, 2)
            regs = [S(nx, qt, kt) + r for kt in range(2) for qt in range(3) for r in range(4)]
            mx = []
            m0_, m1_ = vM, vM + 1
            mx.append(f"v_max3_f32 v{m0_}, v{regs[0]}, v{regs[1]}, v{regs[2]}")
            mx.append(f"v_max3_f32 v{m1_}, v{regs[3]}, v{regs[4]}, v{regs[5]}")
            rest = regs[6:]
            for i in range(0, len(rest), 2):
                m = m0_ if (i // 2) % 2 == 0 else m1_
                mx.append(f"v_max3_f32 v{m}, v{m}, v{rest[i]}, v{rest[i+1]}")
            mx.append(f"v_max_f32 v{m0_}, v{m0_}, v{m1_}")
            mx.append(f"v_cmp_lt_f32 vcc, {f32(THR)}, v{m0_}")
            mi = iter(mx)
            def nm():
                x = next(mi, None)
                if x: a(x)
            for f in range(8, 16):
                fill = [[], [], []]
                if f == 13:
                    a("s_barrier"); s.adv_apply()
                fill[0].append(lambda f=f: rd(f + 3))
                if f == 12: fill[1].append(lambda: s.adv_addr())
                if f >= 9:
                    fill[1].append(nm); fill[2].append(nm)
                pv(par, f, fill)
            assert next(mi, None) is None
            R_ = a.new("L_rare"); Bk = a.new("L_back")
            a(f"s_cbranch_vccnz {R_}")
            a.lab(Bk)
            rare.append((R_, Bk, nx))
        L = a.new("L_al"); F = a.new("L_af")
        a.lab(L)
        step(0)
        assert q.q == q0
        a(f"s_cmp_eq_u32 {sI}, 7\ns_cbranch_scc1 {F}")
        step(1)
        assert q.q == q0
        a(f"s_add_u32 {sI}, {sI}, 1\ns_branch {L}")
        for (R_, Bk, nx) in rare:
            a.lab(R_)
            a("s_nop 7")
            for qt in range(3):
                rowmax(nx, qt, vM + qt, vM + 4)
                a(f"v_max_f32 v{vM+qt}, 0, v{vM+qt}\nv_sub_f32 v{vM+5}, 0, v{vM+qt}\nv_exp_f32 v{vM+5}, v{vM+5}")
                for r in range(8): a(f"v_sub_f32 v{S(nx,qt)+r}, v{S(nx,qt)+r}, v{vM+qt}")
                for r in range(4): a(f"v_sub_f32 v{vCI+qt*4+r}, v{vCI+qt*4+r}, v{vM+qt}")
                for r in range(4): a(f"v_mul_f32 v{vL+qt*4+r}, v{vL+qt*4+r}, v{vM+5}")
                for dt in range(8):
                    for r in range(4): a(f"v_mul_f32 v{acc(dt,qt)+r}, v{acc(dt,qt)+r}, v{vM+5}")
            a(f"s_nop 1\ns_branch {Bk}")
        a.lab(F)
        for f in range(8, 11): rd(f)
        for i in range(24):
            ex(1, i)()
            if i >= 2 and i % 2 == 0: cv(1, i // 2 - 1)()
        ones(1, 0); cv(1, 11)(); ones(1, 1); a("s_nop 0"); ones(1, 2)
        for f in range(8, 16):
            pv(1, f, [[lambda f=f: rd(f + 3)] if f + 3 < 16 else [], [], []])
        s.next_slot(sSLOT)
        s.stamp()
        for qt in range(3): a(f"v_rcp_f32 v{vM+qt}, v{vL+qt*4}")
        a(f"""v_bfe_u32 v{vT}, v0, 3, 1
        s_mul_i32 {sT0}, {sWV}, 6
        v_add_u32 v{vT}, {sT0}, v{vT}
        v_lshlrev_b32 v{vT}, 10, v{vT}
        v_and_b32 v{vT+1}, 7, v0
        v_lshl_add_u32 v{vT}, v{vT+1}, 6, v{vT}
        v_lshrrev_b32 v{vT+1}, 2, v0
        v_sub_u32 v{vT+1}, 0, v{vT+1}
        v_and_b32 v{vT+1}, 3, v{vT+1}
        v_lshrrev_b32 v{vT+2}, 5, v0
        v_bfe_u32 v{vT+3}, v0, 4, 1
        v_lshl_or_b32 v{vT+2}, v{vT+3}, 1, v{vT+2}
        v_xor_b32 v{vT+1}, v{vT+1}, v{vT+2}
        v_lshl_add_u32 v{vT}, v{vT+1}, 4, v{vT}
        v_add_u32 v{vT+1}, 4096, v{vT}""")
        s.head_of_sel(sT0)
        a(f"""s_lshl_b32 {sT1}, {sPM}, 5
        s_add_u32 {sT0}, {sT0}, {sT1}
        s_mul_i32 {sT0}, {sT0}, 49152
        s_add_u32 {sT0}, {sT0}, {WS_O}
        s_add_u32 {sT1}, {sT0}, 24576""")
        s.pack_acc(8, lambda mt: f"v{vM+mt}", qreg)
        for mt in range(3):
            for ks in range(4):
                a(f"buffer_store_dwordx4 {vr(qreg(mt, ks))}, v{vT + (1 if mt == 2 else 0)}, {srd(SWS)}, {sT0 if ks < 2 else sT1} offen offset:{(mt & 1)*2048 + (ks & 1)*512} sc1")
        a(f"s_lshl_b32 {sT0}, 1, {sSEL}\ns_or_b32 {sPEND}, {sPEND}, {sT0}")

    def wsq_addr(s):
        s.a(f"""s_mul_i32 {sT0}, {sWG}, 49152
        s_mul_i32 {sT1}, {sWV}, 12288
        s_add_u32 {sT0}, {sT0}, {sT1}
        s_add_u32 {sT0}, {sT0}, {WS_Q}
        v_lshlrev_b32 v{vT}, 4, v0""")

    def compute(s, kname, has_main, tailcfg):
        a = s.a
        CN = f"{kname}_cnext"; CA = f"{kname}_catt"; CT = f"{kname}_ctail"; CE = f"{kname}_cend"
        a(f"""s_lshl_b32 {sFOFF}, {sPM}, 1
        s_add_u32 {sFOFF}, {sFOFF}, {sG}
        s_lshl_b32 {sFOFF}, {sFOFF}, 1
        s_lshr_b32 {sT0}, {sHS}, 2
        s_add_u32 {sFOFF}, {sFOFF}, {sT0}
        s_lshl_b32 {sFOFF}, {sFOFF}, 2
        s_and_b32 {sFSH}, {sHS}, 3
        s_lshl_b32 {sFSH}, {sFSH}, 3
        s_mov_b32 {sPEND}, 0""")
        a.lab(CN)
        s.decode()
        if tailcfg is not None: a(f"s_cmp_eq_u32 {sCODE}, 6\ns_cbranch_scc1 {CT}")
        if has_main:
            a(f"s_cmp_eq_u32 {sCODE}, 0\ns_cbranch_scc1 {CE}")
            a(f"s_cmp_eq_u32 {sCODE}, 3\ns_cbranch_scc1 {CA}")
            G = a.new("L_cg")
            a(f"s_cmp_lg_u32 {sCODE}, 4\ns_cbranch_scc1 {G}")
            s.wsq_addr()
            a("s_waitcnt vmcnt(0)")
            for i in range(12):
                if i % 4 == 0 and i: a(f"s_add_u32 {sT0}, {sT0}, 4096")
                a(f"buffer_load_dwordx4 {vr(vQ + 4*i)}, v{vT}, {srd(SWS)}, {sT0} offen offset:{(i % 4)*1024} sc1")
            a(f"s_branch {CA}")
            a.lab(G)
            a(f"s_cmp_eq_u32 {sCODE}, 5\ns_cselect_b32 {sN}, 24, 16")
            s.gemm_addr(False)
            for r in range(96): a(f"v_mov_b32 v{vACC+r}, 0")
            def hk():
                a("s_waitcnt vmcnt(0)\ns_barrier"); s.signal()
            s.gemm_loop(False, (4, hk) if s.mode == "fused" else None)
            if s.mode == "fused":
                O5 = a.new("L_o5")
                a(f"s_cmp_eq_u32 {sCODE}, 5\ns_cbranch_scc1 {O5}")
            a(f"s_mov_b32 {sT2}, {f32(QSCALE)}")
            s.pack_acc(8, lambda mt: sT2, qreg)
            a(f"s_cmp_eq_u32 {sCODE}, 1\ns_cbranch_scc1 {CN}")
            s.wsq_addr()
            for i in range(12):
                if i % 4 == 0 and i: a(f"s_add_u32 {sT0}, {sT0}, 4096")
                a(f"buffer_store_dwordx4 {vr(vQ + 4*i)}, v{vT}, {srd(SWS)}, {sT0} offen offset:{(i % 4)*1024}")
            a(f"s_branch {CN}")
            if s.mode == "fused":
                a.lab(O5)
                a(f"""s_mul_i32 {sT0}, {sWG}, 98304
                s_mul_i32 {sT1}, {sWV}, 12288
                s_add_u32 {sT0}, {sT0}, {sT1}
                s_add_u32 {sT0}, {sT0}, {WS_P}
                v_lshlrev_b32 v{vT}, 4, v0""")
                for i in range(24):
                    if i == 12: a(f"s_add_u32 {sT0}, {sT0}, {49152 - 8192}")
                    elif i % 4 == 0 and i: a(f"s_add_u32 {sT0}, {sT0}, 4096")
                    a(f"buffer_store_dwordx4 {vr(vACC + 4*i)}, v{vT}, {srd(SWS)}, {sT0} offen offset:{(i % 4)*1024} sc1")
                a(f"s_or_b32 {sPEND}, {sPEND}, 4\ns_nop 0")
                a(f"s_branch {CN}")
            a.lab(CA)
            s.att()
            a(f"s_branch {CN}")
        if tailcfg is not None:
            a.lab(CT)
            if tailcfg["sync"]:
                a("s_waitcnt vmcnt(0)\ns_barrier"); s.signal()
                s.stamp()
            a(f"s_mov_b32 {sN}, {tailcfg['n']}")
            s.gemm_addr(True)
            for r in range(48): a(f"v_mov_b32 v{vACC+r}, 0")
            vP = vACC + 48
            def hk():
                a("s_barrier")
                a(f"s_xor_b32 {sFOFF}, {sFOFF}, 8\ns_lshl_b32 {sPEND}, 4, {sFSH}\nv_mov_b32 v{vT+1}, 0")
                s.poll(sFOFF, sPEND, vT, vT + 1)
                a(f"""s_and_b32 {sT0}, {sWG}, 0xf7
                s_mul_i32 {sT0}, {sT0}, 98304
                s_mul_i32 {sT1}, {sWV}, 12288
                s_add_u32 {sT0}, {sT0}, {sT1}
                s_mul_i32 {sT1}, {sG}, 49152
                s_add_u32 {sT0}, {sT0}, {sT1}
                s_add_u32 {sT0}, {sT0}, {WS_P}
                v_lshlrev_b32 v{vT}, 4, v0""")
                for i in range(24):
                    if i == 12: a(f"s_add_u32 {sT0}, {sT0}, {8*98304 - 8192}")
                    elif i % 4 == 0 and i: a(f"s_add_u32 {sT0}, {sT0}, 4096")
                    a(f"buffer_load_dwordx4 {vr(vP + 4*i)}, v{vT}, {srd(SWS)}, {sT0} offen offset:{(i % 4)*1024} sc1")
            s.gemm_loop(True, (tailcfg["n"] - 4, hk) if tailcfg["sync"] else None)
            if tailcfg["sync"]:
                a("s_waitcnt vmcnt(0)")
                for r in range(48): a(f"v_add_f32 v{vACC+r}, v{vACC+r}, v{vP+r}")
                for r in range(48): a(f"v_add_f32 v{vACC+r}, v{vACC+r}, v{vP+48+r}")
            dst = lambda mt, pr: vS + (mt * 2 + pr) * 4
            s.pack_acc(4, None, dst)
            a(f"""v_and_b32 v{vT}, 15, v0
            v_lshlrev_b32 v{vT}, 12, v{vT}
            v_lshrrev_b32 v{vT+2}, 5, v0
            v_bfe_u32 v{vT+3}, v0, 4, 1
            v_lshl_or_b32 v{vT+2}, v{vT+3}, 1, v{vT+2}
            v_lshl_add_u32 v{vT}, v{vT+2}, 4, v{vT}
            s_mul_i32 {sT0}, {sMB}, 192
            s_mul_i32 {sT1}, {sWV}, 48
            s_add_u32 {sT0}, {sT0}, {sT1}
            s_lshl_b32 {sT0}, {sT0}, 12
            s_lshl_b32 {sT1}, {sP}, 11
            s_add_u32 {sT0}, {sT0}, {sT1}
            s_lshl_b32 {sT1}, {sHS}, 8
            s_add_u32 {sT0}, {sT0}, {sT1}
            s_lshl_b32 {sT1}, {sG}, 7
            s_add_u32 {sT0}, {sT0}, {sT1}""")
            for mt in range(3):
                if mt: a(f"s_add_u32 {sT0}, {sT0}, 65536")
                for pr in range(2):
                    a(f"buffer_store_dwordx4 {vr(dst(mt, pr))}, v{vT}, {srd(SOUT)}, {sT0} offen offset:{pr*64}")
        a.lab(CE)
        if s.stamps: a("s_waitcnt vmcnt(0)")
        s.stamp()
        s.stamp_dump()
        a.lab(f"{kname}_end")
        a("s_endpgm")

    def kernel(s, kname, progs, has_main, tailcfg):
        s.setup(kname, progs)
        s.compute(kname, has_main, tailcfg)
        s.loader(kname, has_main, tailcfg)

    def desc(s, kname):
        return f""".amdhsa_kernel {kname}
  .amdhsa_next_free_vgpr 256
  .amdhsa_next_free_sgpr 102
  .amdhsa_accum_offset 256
  .amdhsa_group_segment_fixed_size 0
  .amdhsa_kernarg_size 104
  .amdhsa_user_sgpr_count 2
  .amdhsa_user_sgpr_kernarg_segment_ptr 1
  .amdhsa_system_sgpr_workgroup_id_x 1
.end_amdhsa_kernel"""

    def build(s):
        def prog(l):
            v = 0
            for i, c in enumerate(l): v |= c << (4 * i)
            return v
        hdr = []
        K = NAME + "_kernel"
        if s.mode == "fused":
            hdr.append("; @launch grid=(256,1,1) block=(512,1,1) lds=163840")
            s.kernel(K, (prog([1, 3, 9, 11, 5, 6]), prog([10, 1, 3, 5, 12, 6])), True, dict(sync=True, kst=48, n=16))
            ks = [K]
        else:
            K2 = "oproj_kernel"
            hdr.append(f"; @launch kernel={K} grid=(256,1,1) block=(512,1,1) lds=163840")
            hdr.append(f"; @launch kernel={K2} grid=(256,1,1) block=(512,1,1) lds=163840")
            s.kernel(K, (prog([1, 3, 9, 11]), prog([10, 1, 3, 12])), True, None)
            st = s.stamps; s.stamps = False
            s.kernel(K2, (6, 6), False, dict(sync=False, kst=0, n=64))
            s.stamps = st
            ks = [K, K2]
        if s.o.get("nocomp"):
            s.a.l = [x for x in s.a.l if not re.match(r"\s+(v_mfma|ds_read|v_exp|v_cvt_pk|v_max3|s_cbranch_vccnz)", x)]
        if s.o.get("nostore"):
            s.a.l = [x for x in s.a.l if not re.match(r"\s+buffer_store_dwordx4", x)]
        if s.o.get("nomfma"):
            s.a.l = [x for x in s.a.l if not re.match(r"\s+(v_mfma|v_exp|v_cvt_pk|v_max3|s_cbranch_vccnz)", x)]
        if s.o.get("nolds"):
            s.a.l = [x for x in s.a.l if not re.match(r"\s+(ds_read|s_cbranch_vccnz)", x)]
        if s.o.get("noload"):
            s.a.l = [x for x in s.a.l if not (re.match(r"\s+buffer_load.* lds", x) or "s_cbranch_vccnz" in x)]
        out = hdr + ['.amdgcn_target "amdgcn-amd-amdhsa--gfx950"', ".text"] + s.a.l
        out += ['.section .rodata,"a"']
        for k in ks: out += [".p2align 6", s.desc(k)]
        return "\n".join(out) + "\n"

if __name__ == "__main__":
    import argparse, json
    ap = argparse.ArgumentParser()
    ap.add_argument("-o", default="k.s"); ap.add_argument("--mode", default="fused"); ap.add_argument("--stamps", action="store_true")
    ap.add_argument("--opts", default="{}")
    A = ap.parse_args()
    open(A.o, "w").write(Gen(A.mode, A.stamps, json.loads(A.opts)).build())
```

```python
import sys, re, math
NAME = "concat_heads__mha_block_cached__gqa_block_cached__near_ridge"

SLOT = 40960
NSLOT = 4
WS_Q = 0x0
WS_O = 0x2000000
WS_P = 0x4000000
WS_T = 0x8000000
WS_SIZE = 308281344
THR = 8.0
QSCALE = math.log2(math.e) / math.sqrt(128.0)

import struct
def f32(x): return "0x%08x" % struct.unpack("<I", struct.pack("<f", x))[0]

class Asm:
    def __init__(s): s.l = []; s.uid = 0
    def __call__(s, t):
        for x in t.split("\n"):
            x = x.strip()
            if x: s.l.append("    " + x)
    def lab(s, n): s.l.append(n + ":")
    def c(s, t): s.l.append("    ; " + t)
    def new(s, p): s.uid += 1; return f"{p}_{s.uid}"

class LQ:
    def __init__(s, a): s.a = a; s.q = []
    def rd(s, ins, tag):
        s.a(ins); s.q.append(tag); assert len(s.q) <= 15, "lgkm overflow"
    def need(s, tag):
        idx = [i for i, t in enumerate(s.q) if t == tag]
        if not idx: return
        n = len(s.q) - 1 - idx[-1]
        s.a(f"s_waitcnt lgkmcnt({n})"); s.q = s.q[idx[-1] + 1:]
    def drain(s):
        s.a("s_waitcnt lgkmcnt(0)"); s.q = []

def vr(b, n=4): return f"v[{b}:{b+n-1}]"
def mfma(d, a_, b_, c): return f"v_mfma_f32_16x16x32_bf16 {vr(d)}, {vr(a_)}, {vr(b_)}, {c if isinstance(c, str) else vr(c)}"

sWG, sWV, sP, sG, sMB, sHS, sROT, sPM = "s2", "s3", "s4", "s5", "s6", "s7", "s8", "s9"
sPROG, sSEL = "s10", "s11"
SA, SB, SK, SV, SWS, SOUT, SDBG = 28, 32, 36, 40, 44, 48, 52
def srd(b): return f"s[{b}:{b+3}]"
sSLOT, sI, sN, sT0, sT1, sT2, sCODE = "s56", "s57", "s58", "s59", "s60", "s61", "s62"
sFIRST, sKST, sMASK, sROFF, sBA, sMA, sJA, sBB, sMBm, sJB, sPOLL, sA, sB_, sM0, sK0, sK1, sTILE = \
    "s63", "s64", "s65", "s66", "s67", "s68", "s69", "s70", "s71", "s72", "s73", "s74", "s75", "s76", "s77", "s78", "s79"
sDL, sPEND, sFOFF, sFSH, sHEAD = "s63", "s64", "s65", "s66", "s67"
sSTAMP = 80

vLANE, vA0, vA1, vA2 = 0, 1, 2, 3
vT = 4
vONES = 8
vCI = 12
vL = 24
vRING = 36
vM = 52
vS = 64
vACC = 112
vQ = 208
def acc(nt, mt): return vACC + (nt * 3 + mt) * 4
def qreg(mt, ks): return vQ + (mt * 4 + ks) * 4

class Gen:
    def __init__(s, mode="fused", stamps=False, opts=None):
        s.mode = mode; s.stamps = stamps; s.a = Asm(); s.o = opts or {}
        s.nst = 0
        global WS_Q, WS_O, WS_P
        base = int(s.o.get("wsbase", 0))
        WS_Q = base; WS_O = base + 0x1000000; WS_P = base + 0x3000000
        if base == 0: WS_O = 0x2000000; WS_P = 0x4000000

    def stamp(s):
        if not s.stamps: return
        a = s.a
        a("s_memrealtime s[100:101]\ns_waitcnt lgkmcnt(0)")
        for i in range(sSTAMP + 15, sSTAMP, -1): a(f"s_mov_b32 s{i}, s{i-1}")
        a(f"s_mov_b32 s{sSTAMP}, s100")

    def stamp_dump(s):
        if not s.stamps: return
        a = s.a
        if "dbgwg" in s.o:
            L = a.new("L_sd")
            a(f"s_cmp_lg_u32 {sWG}, {s.o['dbgwg']}\ns_cbranch_scc1 {L}\ns_cmp_lg_u32 {sWV}, 0\ns_cbranch_scc1 {L}")
            a(f"s_memtime s[100:101]\ns_waitcnt lgkmcnt(0)\ns_sub_u32 s{sSTAMP+15}, s100, s99")
            a(f"v_mov_b32 v{vT}, 0")
            for i in range(16):
                if i < 15: a(f"s_sub_u32 {sT0}, s{sSTAMP}, s{sSTAMP+i}")
                else: a(f"s_mov_b32 {sT0}, s{sSTAMP+i}")
                a(f"v_mov_b32 v{vT+1}, {sT0}\nbuffer_store_dword v{vT+1}, v{vT}, {srd(SDBG)}, 0 offen offset:{4*i}\ns_nop 1")
            a("s_waitcnt vmcnt(0)")
            a.lab(L)
            return
        a(f"s_lshl_b32 {sT0}, {sWG}, 3\ns_add_u32 {sT0}, {sT0}, {sWV}\ns_lshl_b32 {sT0}, {sT0}, 6\ns_add_u32 {sT0}, {sT0}, {WS_T}")
        a(f"v_mov_b32 v{vT}, 0")
        for i in range(16):
            a(f"v_mov_b32 v{vT+1}, s{sSTAMP+i}\nbuffer_store_dword v{vT+1}, v{vT}, {srd(SWS)}, {sT0} offen offset:{4*i}\ns_nop 1")
        a("s_waitcnt vmcnt(0)")

    def setup(s, kname, progs):
        a = s.a
        a.l.append(f".globl {kname}\n.p2align 8\n.type {kname},@function\n{kname}:")
        a(f"""s_cmp_ge_u32 {sWG}, 256
        s_cbranch_scc1 {kname}_end
        s_and_b32 {sT0}, {sWG}, 7
        s_lshr_b32 {sP}, {sT0}, 2
        s_mul_i32 {sT1}, {sP}, 40
        s_add_u32 s60, s0, {sT1}
        s_addc_u32 s61, s1, 0
        s_load_dwordx8 s[12:19], s[60:61], 0
        s_load_dwordx2 s[20:21], s[60:61], 32
        s_load_dwordx2 s[22:23], s[0:1], 96
        s_load_dwordx4 s[24:27], s[0:1], 80
        v_lshrrev_b32 v1, 6, v0
        v_and_b32 v{vLANE}, 63, v0
        v_readfirstlane_b32 {sWV}, v1
        s_bfe_u32 {sG}, {sWG}, 0x10003
        s_lshr_b32 {sI}, {sWG}, 4
        s_and_b32 {sN}, {sI}, 3
        s_lshr_b32 {sI}, {sI}, 2
        s_add_u32 {sROT}, {sN}, {sI}
        s_and_b32 {sROT}, {sROT}, 3
        s_and_b32 {sMB}, {sT0}, 1
        s_lshl_b32 {sMB}, {sMB}, 2
        s_add_u32 {sMB}, {sMB}, {sN}
        s_bfe_u32 {sHS}, {sT0}, 0x10001
        s_lshl_b32 {sHS}, {sHS}, 2
        s_add_u32 {sHS}, {sHS}, {sI}
        s_lshl_b32 {sPM}, {sP}, 3
        s_add_u32 {sPM}, {sPM}, {sMB}
        s_cmp_eq_u32 {sG}, 0
        s_cselect_b32 {sPROG}, {hex(progs[0])}, {hex(progs[1])}""" if progs[0] == progs[1] else f"""s_cmp_ge_u32 {sWG}, 256
        s_cbranch_scc1 {kname}_end
        s_and_b32 {sT0}, {sWG}, 7
        s_lshr_b32 {sP}, {sT0}, 2
        s_mul_i32 {sT1}, {sP}, 40
        s_add_u32 s60, s0, {sT1}
        s_addc_u32 s61, s1, 0
        s_load_dwordx8 s[12:19], s[60:61], 0
        s_load_dwordx2 s[20:21], s[60:61], 32
        s_load_dwordx2 s[22:23], s[0:1], 96
        s_load_dwordx4 s[24:27], s[0:1], 80
        v_lshrrev_b32 v1, 6, v0
        v_and_b32 v{vLANE}, 63, v0
        v_readfirstlane_b32 {sWV}, v1
        s_bfe_u32 {sG}, {sWG}, 0x10003
        s_lshr_b32 {sI}, {sWG}, 4
        s_and_b32 {sN}, {sI}, 3
        s_lshr_b32 {sI}, {sI}, 2
        s_add_u32 {sROT}, {sN}, {sI}
        s_and_b32 {sROT}, {sROT}, 3
        s_and_b32 {sMB}, {sT0}, 1
        s_lshl_b32 {sMB}, {sMB}, 2
        s_add_u32 {sMB}, {sMB}, {sN}
        s_bfe_u32 {sHS}, {sT0}, 0x10001
        s_lshl_b32 {sHS}, {sHS}, 2
        s_add_u32 {sHS}, {sHS}, {sI}
        s_lshl_b32 {sPM}, {sP}, 3
        s_add_u32 {sPM}, {sPM}, {sMB}
        s_mov_b32 {sPROG}, {hex(progs[0])}
        s_cmp_eq_u32 {sG}, 0
        s_cselect_b32 {sPROG}, {sPROG}, {hex(progs[1])}""")
        if "progs" in s.o and kname.startswith("concat"):
            a(f"s_mov_b32 {sPROG}, {s.o['progs'][0]}\ns_cmp_eq_u32 {sG}, 0\ns_cselect_b32 {sPROG}, {sPROG}, {s.o['progs'][1]}")
            a(f"s_cmp_eq_u32 {sPROG}, 0\ns_cbranch_scc1 {kname}_end")
        a(f"s_mov_b32 {sSLOT}, 0\ns_waitcnt lgkmcnt(0)")
        for (b, lo, size) in [(SA, 12, 3145728), (SB, 18, 8388608), (SK, 14, 67108864), (SV, 16, 67108864),
                              (SWS, 22, WS_SIZE), (SOUT, 24, 6291456), (SDBG, 26, 256)]:
            a(f"s_mov_b32 s{b}, s{lo}\ns_mov_b32 s{b+1}, s{lo+1}\ns_mov_b32 s{b+2}, {size}\ns_mov_b32 s{b+3}, 0x20000")
        if s.stamps:
            for i in range(16): a(f"s_mov_b32 s{sSTAMP+i}, 0")
            a("s_memtime s[100:101]\ns_waitcnt lgkmcnt(0)\ns_mov_b32 s99, s100")
        s.stamp()
        a(f"s_cmp_ge_u32 {sWV}, 4\ns_cbranch_scc1 {kname}_loader")

    def next_slot(s, reg):
        s.a(f"s_add_u32 {reg}, {reg}, {SLOT}\ns_cmp_eq_u32 {reg}, {SLOT*NSLOT}\ns_cselect_b32 {reg}, 0, {reg}")

    def decode(s):
        s.a(f"s_and_b32 {sCODE}, {sPROG}, 7\ns_bfe_u32 {sSEL}, {sPROG}, 0x10003\ns_lshr_b32 {sPROG}, {sPROG}, 4")

    def head_of_sel(s, dst):
        s.a(f"s_lshl_b32 {dst}, {sSEL}, 1\ns_add_u32 {dst}, {dst}, {sG}\ns_lshl_b32 {dst}, {dst}, 3\ns_add_u32 {dst}, {dst}, {sHS}")

    def poll(s, off_reg, mask_reg, vtmp, vzero):
        a = s.a; L = a.new("L_poll"); D = a.new("L_polld")
        a(f"s_mov_b32 {sT2}, 0x40000")
        a.lab(L)
        a(f"""buffer_load_dword v{vtmp}, v{vzero}, {srd(SDBG)}, {off_reg} offen sc1
        s_waitcnt vmcnt(0)
        v_readfirstlane_b32 {sT0}, v{vtmp}
        s_and_b32 {sT0}, {sT0}, {mask_reg}
        s_cmp_eq_u32 {sT0}, {mask_reg}
        s_cbranch_scc1 {D}
        s_sleep 4
        s_sub_u32 {sT2}, {sT2}, 1
        s_cmp_lg_u32 {sT2}, 0
        s_cbranch_scc1 {L}""")
        a.lab(D)

    def unit_end(s, n):
        a = s.a; L = a.new("L_ue")
        s.next_slot(sSLOT)
        a(f"s_cmp_eq_u32 {sFIRST}, 0\ns_mov_b32 {sFIRST}, 0\ns_cbranch_scc0 {L}\ns_waitcnt vmcnt({n})\ns_barrier")
        a.lab(L)

    def loader_gemm_loop(s, kname, tail, polls):
        a = s.a; L = a.new("L_lg")
        vRA, vRB = 10, 11
        a(f"s_mov_b32 {sI}, 0")
        a.lab(L)
        if polls:
            S = a.new("L_nop")
            a(f"s_and_b32 {sT0}, {sI}, 7\ns_or_b32 {sT0}, {sT0}, {sPOLL}\ns_cmp_lg_u32 {sT0}, 0\ns_cbranch_scc1 {S}")
            a(f"""s_add_u32 {sT0}, {sKST}, {sI}
            s_lshr_b32 {sT0}, {sT0}, 3
            s_lshr_b32 {sT1}, {sT0}, 2
            s_lshl_b32 {sB_}, 0x1111, {sT1}
            s_and_b32 {sT1}, {sT0}, 1
            s_lshl_b32 {sT1}, {sT1}, 4
            s_lshl_b32 {sB_}, {sB_}, {sT1}
            s_bfe_u32 {sT0}, {sT0}, 0x10001
            s_lshl_b32 {sA}, {sPM}, 1
            s_add_u32 {sA}, {sA}, {sT0}
            s_lshl_b32 {sA}, {sA}, 2
            s_add_u32 {sA}, {sA}, 128""")
            s.poll(sA, sB_, 14, 15)
            a.lab(S)
        a(f"""s_add_u32 {sT0}, {sI}, {sROFF}
        s_and_b32 {sT0}, {sT0}, {sMASK}
        s_andn2_b32 {sT1}, {sI}, {sMASK}
        s_add_u32 {sT0}, {sT0}, {sT1}
        s_add_u32 {sT0}, {sT0}, {sKST}
        s_mul_i32 {sA}, {sT0}, {sMA}
        s_add_u32 {sA}, {sA}, {sBA}
        s_mul_i32 {sB_}, {sT0}, {sMBm}
        s_add_u32 {sB_}, {sB_}, {sBB}
        s_lshl_b32 {sT1}, {sWV}, 10
        s_add_u32 {sM0}, {sSLOT}, {sT1}""")
        fa = s.o.get("fa", "sc1"); fb = s.o.get("fb", "")
        for j in range(6):
            a(f"s_add_u32 m0, {sM0}, {j*4096}")
            if j: a(f"s_add_u32 {sA}, {sA}, {sJA}")
            else: a("s_nop 0")
            a(f"buffer_load_dwordx4 v{vRA}, {srd(SA)}, {sA} offen {fa} lds")
        if tail:
            for oo in range(2):
                a(f"s_add_u32 m0, {sM0}, {24576 + oo*4096}")
                if oo: a(f"s_add_u32 {sB_}, {sB_}, {sJB}")
                else: a("s_nop 0")
                a(f"buffer_load_dwordx4 v{vRB}, {srd(SB)}, {sB_} offen {fb} lds")
            n = 8
        else:
            a(f"s_add_u32 {sM0}, {sM0}, {sT1}")
            for oo in range(2):
                for hf in range(2):
                    a(f"s_add_u32 m0, {sM0}, {24576 + oo*8192 + hf*(1024-128)}")
                    if oo and not hf: a(f"s_add_u32 {sB_}, {sB_}, {sJB}")
                    else: a("s_nop 0")
                    a(f"buffer_load_dwordx4 v{vRB}, {srd(SB)}, {sB_} offen offset:{hf*128} {fb} lds")
            n = 10
        s.unit_end(n)
        a(f"s_add_u32 {sI}, {sI}, 1\ns_cmp_lt_u32 {sI}, {sN}\ns_cbranch_scc1 {L}")

    def loader_o_params(s, kst, n, tail):
        a = s.a
        a(f"""s_mov_b32 s{SA}, s22
        s_mov_b32 s{SA+1}, s23
        s_mov_b32 s{SA+2}, {WS_SIZE}
        s_mov_b32 s{SB}, s20
        s_mov_b32 s{SB+1}, s21
        v_mov_b32 v10, v8
        v_mov_b32 v11, v9
        s_mul_i32 {sBA}, {sPM}, {32*49152}
        s_add_u32 {sBA}, {sBA}, {WS_O}
        s_mov_b32 {sMA}, 24576
        s_mov_b32 {sJA}, 4096
        s_lshl_b32 {sBB}, {sHS}, 8
        s_mov_b32 {sMBm}, {64*2048}
        s_mov_b32 {sJB}, {32*2048}
        s_mov_b32 {sMASK}, 7
        s_lshl_b32 {sROFF}, {sROT}, 1
        s_mov_b32 {sN}, {n}
        s_mov_b32 {sPOLL}, 0""")
        if isinstance(kst, int): a(f"s_mov_b32 {sKST}, {kst}")
        else: a(kst)
        if tail: a(f"s_lshl_b32 {sT0}, {sG}, 7\ns_add_u32 {sBB}, {sBB}, {sT0}")

    def loader(s, kname, has_main, tailcfg):
        a = s.a
        a.lab(f"{kname}_loader")
        a(f"s_sub_u32 {sWV}, {sWV}, 4\ns_mov_b32 {sFIRST}, 1")
        a(f"""v_lshrrev_b32 v1, 5, v0
        v_lshlrev_b32 v1, 6, v1
        v_bfe_u32 v2, v0, 2, 3
        v_and_b32 v3, 3, v0
        s_lshl_b32 {sT0}, {sWV}, 3
        v_add_u32 v4, {sT0}, v2
        v_mov_b32 v15, 0""")
        a(f"""v_lshrrev_b32 v5, 2, v4
        v_sub_u32 v5, 0, v5
        v_and_b32 v5, 3, v5
        v_xor_b32 v5, v5, v3
        v_lshlrev_b32 v5, 4, v5
        v_lshlrev_b32 v6, 11, v4
        v_add3_u32 v6, v6, v5, v1""")
        a(f"""s_and_b32 {sT0}, {sWV}, 1
        s_lshl_b32 {sT1}, {sT0}, 1
        v_xor_b32 v5, {sT1}, v3
        v_lshlrev_b32 v5, 4, v5
        v_add_u32 v5, v5, v1
        v_lshl_add_u32 v7, v4, 13, v5
        v_lshl_add_u32 v9, v4, 11, v5
        s_lshl_b32 {sT1}, {sWV}, 10
        v_lshlrev_b32 v8, 4, v0
        v_add_u32 v8, {sT1}, v8""")
        a(f"""v_xor_b32 v5, {sT0}, v3
        v_lshlrev_b32 v5, 4, v5
        v_add_u32 v5, v5, v1
        v_lshl_add_u32 v12, v4, 8, v5
        v_lshrrev_b32 v5, 2, v2
        v_lshlrev_b32 v5, 1, v5
        v_xor_b32 v5, v5, v3
        v_lshlrev_b32 v5, 4, v5
        v_add_u32 v5, v5, v1
        v_lshl_add_u32 v13, v4, 8, v5
        v_mov_b32 v10, v6
        v_mov_b32 v11, v7""")
        LN = f"{kname}_lnext"; LG = f"{kname}_lgemm"; LA = f"{kname}_latt"; LO = f"{kname}_lomid"; LT = f"{kname}_ltail"; LE = f"{kname}_lend"
        a.lab(LN)
        s.decode()
        if tailcfg is not None:
            a(f"s_cmp_eq_u32 {sCODE}, 6\ns_cbranch_scc1 {LT}")
        if has_main:
            a(f"s_cmp_eq_u32 {sCODE}, 0\ns_cbranch_scc1 {LE}")
            if s.mode == "fused": a(f"s_cmp_eq_u32 {sCODE}, 5\ns_cbranch_scc1 {LO}")
            a(f"s_cmp_ge_u32 {sCODE}, 3\ns_cbranch_scc1 {LA}")
            s.head_of_sel(sT0)
            a(f"""s_mul_i32 {sBA}, {sMB}, {192*2048}
            s_mov_b32 {sMA}, 128
            s_mov_b32 {sJA}, 65536
            s_lshl_b32 {sBB}, {sT0}, 8
            s_mov_b32 {sMBm}, {64*8192}
            s_mov_b32 {sJB}, {32*8192}
            s_mov_b32 {sMASK}, 15
            s_lshl_b32 {sROFF}, {sROT}, 2
            s_lshl_b32 {sT0}, {sG}, 1
            s_add_u32 {sROFF}, {sROFF}, {sT0}
            s_mov_b32 {sKST}, 0
            s_mov_b32 {sN}, 16
            s_mov_b32 {sPOLL}, 1""")
            a.lab(LG)
            s.loader_gemm_loop(kname, False, s.mode == "fused")
            a(f"s_branch {LN}")
            if s.mode == "fused":
                a.lab(LO)
                s.loader_o_params(f"s_sub_u32 {sT0}, 1, {sG}\ns_mul_i32 {sKST}, {sT0}, 24", 24, False)
                a(f"s_branch {LG}")
            a.lab(LA)
            s.head_of_sel(sT0)
            a(f"""s_lshl_b32 {sT1}, {sMB}, 6
            s_add_u32 {sT0}, {sT0}, {sT1}
            s_lshl_b32 {sK0}, {sT0}, 17
            s_lshr_b32 {sTILE}, {sWG}, {s.o.get("rotsh", 4)}
            s_and_b32 {sTILE}, {sTILE}, 15
            s_lshl_b32 {sTILE}, {sTILE}, 13
            s_mov_b32 {sI}, 0""")
            if not s.o.get("krot", True): a(f"s_mov_b32 {sTILE}, 0")
            fk = s.o.get("fk", "nt")
            def kv(sr, vo, base):
                a(f"s_add_u32 {sA}, {sK0}, {sTILE}\ns_add_u32 {sB_}, {sA}, {4194304}")
                for it in range(2):
                    for hf in range(2):
                        a(f"s_add_u32 m0, {sM0}, {base + it*8192 + hf*(1024-128)}\ns_nop 0")
                        a(f"buffer_load_dwordx4 v{vo}, {srd(sr)}, {sA if it == 0 else sB_} offen offset:{hf*128} {fk} lds")
            def m0base(): a(f"s_lshl_b32 {sT1}, {sWV}, 11\ns_add_u32 {sM0}, {sSLOT}, {sT1}")
            m0base(); kv(SK, 12, 0); s.unit_end(4)
            L = a.new("L_la"); a.lab(L)
            m0base()
            a(f"s_mov_b32 {sK1}, {sTILE}\ns_add_u32 {sTILE}, {sTILE}, 8192\ns_and_b32 {sTILE}, {sTILE}, 0x1ffff")
            kv(SK, 12, 0)
            a(f"s_mov_b32 {sT0}, {sTILE}\ns_mov_b32 {sTILE}, {sK1}")
            a(f"s_mov_b32 {sK1}, {sT0}")
            kv(SV, 13, 16384)
            a(f"s_mov_b32 {sTILE}, {sK1}")
            s.unit_end(8)
            a(f"s_add_u32 {sI}, {sI}, 1\ns_cmp_lt_u32 {sI}, 15\ns_cbranch_scc1 {L}")
            m0base(); kv(SV, 13, 16384); s.unit_end(4)
            a(f"s_branch {LN}")
        if tailcfg is not None:
            a.lab(LT)
            if tailcfg["sync"]:
                a(f"s_waitcnt vmcnt(0)\ns_barrier\ns_barrier\ns_mov_b32 {sFIRST}, 1")
            s.loader_o_params(tailcfg["kst"], tailcfg["n"], True)
            s.loader_gemm_loop(kname, True, tailcfg["sync"])
        a.lab(LE)
        a("s_waitcnt vmcnt(0)\ns_barrier")
        s.stamp()
        if s.stamps: a(f"s_add_u32 {sWV}, {sWV}, 4")
        s.stamp_dump()
        a("s_endpgm")

    def adv_addr(s):
        a = s.a
        a(f"s_mov_b32 {sDL}, {sSLOT}")
        s.next_slot(sSLOT)
        a(f"s_sub_u32 {sDL}, {sSLOT}, {sDL}")
    def adv_apply(s):
        for r in (vA0, vA1, vA2): s.a(f"v_add_u32 v{r}, {sDL}, v{r}")

    def pack_acc(s, nts, scale, dst):
        a = s.a
        for mt in range(3):
            for pr in range(nts // 2):
                d = dst(mt, pr); x = acc(2 * pr, mt); y = acc(2 * pr + 1, mt)
                if scale is not None:
                    for r in range(4): a(f"v_mul_f32 v{x+r}, {scale(mt)}, v{x+r}")
                    for r in range(4): a(f"v_mul_f32 v{y+r}, {scale(mt)}, v{y+r}")
                a(f"v_cvt_pk_bf16_f32 v{d}, v{x}, v{x+1}\nv_cvt_pk_bf16_f32 v{d+2}, v{y}, v{y+1}")
                a(f"v_cvt_pk_bf16_f32 v{d+1}, v{x+2}, v{x+3}\nv_cvt_pk_bf16_f32 v{d+3}, v{y+2}, v{y+3}")
                a(f"s_nop 0\nv_permlane16_swap_b32 v{d}, v{d+2}\nv_permlane16_swap_b32 v{d+1}, v{d+3}")

    def signal(s):
        a = s.a; L = a.new("L_sig")
        a(f"""s_cmp_lg_u32 {sWV}, 0
        s_cbranch_scc1 {L}
        s_cmp_eq_u32 {sPEND}, 0
        s_cbranch_scc1 {L}
        s_lshl_b32 {sT0}, {sPEND}, {sFSH}
        v_mov_b32 v{vT}, {sT0}
        v_mov_b32 v{vT+1}, 0
        s_mov_b64 exec, 1
        buffer_atomic_or v{vT}, v{vT+1}, {srd(SDBG)}, {sFOFF} offen sc1
        s_mov_b64 exec, -1""")
        a.lab(L)
        a(f"s_mov_b32 {sPEND}, 0")

    def gemm_addr(s, tail):
        a = s.a
        a(f"""v_bfe_u32 v{vT}, v0, 3, 1
        s_mul_i32 {sT0}, {sWV}, 6
        v_add_u32 v{vT}, {sT0}, v{vT}
        v_lshlrev_b32 v{vT}, 10, v{vT}
        v_and_b32 v{vT+1}, 7, v0
        v_lshl_add_u32 v{vT}, v{vT+1}, 6, v{vT}
        v_lshrrev_b32 v{vT+1}, 2, v0
        v_sub_u32 v{vT+1}, 0, v{vT+1}
        v_and_b32 v{vT+1}, 3, v{vT+1}
        v_lshrrev_b32 v{vT+2}, 4, v0
        v_xor_b32 v{vT+1}, v{vT+1}, v{vT+2}
        v_lshl_add_u32 v{vT}, v{vT+1}, 4, v{vT}
        v_add_u32 v{vA0}, {sSLOT}, v{vT}""")
        sh = 10 if tail else 11
        a(f"""v_lshlrev_b32 v{vT}, {sh}, v{vT+2}
        v_bfe_u32 v{vT+1}, v0, 2, 2
        v_lshl_add_u32 v{vT}, v{vT+1}, 6, v{vT}
        v_and_b32 v{vT+1}, 1, v{vT+2}
        v_lshl_add_u32 v{vT}, v{vT+1}, 5, v{vT}
        v_and_b32 v{vT+1}, 3, v0
        v_lshl_add_u32 v{vT}, v{vT+1}, 3, v{vT}
        v_add_u32 v{vT}, 24576, v{vT}
        v_xor_b32 v{vT+1}, 32, v{vT}
        v_add_u32 v{vA1}, {sSLOT}, v{vT}
        v_add_u32 v{vA2}, {sSLOT}, v{vT+1}""")

    def gemm_loop(s, tail, hook):
        a = s.a; q = LQ(a)
        NT = 4 if tail else 8
        R = 8; LA = s.o.get("gla", 5) if not tail else 4
        vX = vS; vW = vS + 24
        wreg = [88, 92, 96, 100, 104, 108, 36, 40]
        NF = 2 * NT
        kso = 4096 if tail else 8192
        def rdW(f):
            ks, nt = (f % NF) // NT, f % NT
            r = wreg[f % R]; ad = vA1 if nt % 2 == 0 else vA2
            for sec in range(2):
                q.rd(f"ds_read_b64_tr_b16 {vr(r + 2*sec, 2)}, v{ad} offset:{ks*kso + (nt>>1)*512 + sec*256}", ("W", f % NF))
        def rdX(ks, mt):
            q.rd(f"ds_read_b128 {vr(vX + ks*12 + mt*4)}, v{vA0} offset:{mt*2048 + ks*512}", ("X", ks, mt))
        def grp(f, reads):
            ks, nt = f // NT, f % NT
            q.need(("W", f))
            for mt in range(3):
                q.need(("X", ks, mt))
                a(mfma(acc(nt, mt), wreg[f % R], vX + ks*12 + mt*4, acc(nt, mt)))
                if mt < len(reads): reads[mt]()
            for r in reads[3:]: r()
        a("s_barrier")
        s.stamp()
        for mt in range(3): rdX(0, mt)
        for f in range(LA): rdW(f)
        a(f"s_mov_b32 {sI}, 1")
        q0 = list(q.q)
        L = a.new("L_gl"); F = a.new("L_gf"); B = a.new("L_gb"); H = a.new("L_gh")
        a.lab(L)
        cut = NF - LA
        for f in range(cut):
            reads = [lambda f=f: rdW(f + LA)]
            if f < 3: reads.append(lambda f=f: rdX(1, f))
            if f == cut - 1: reads.append(lambda: s.adv_addr())
            grp(f, reads)
        qcut = list(q.q)
        a(f"s_cmp_eq_u32 {sI}, {sN}\ns_cbranch_scc1 {F}")
        if hook: a(f"s_cmp_eq_u32 {sI}, {hook[0]}\ns_cbranch_scc1 {H}")
        a("s_barrier")
        a.lab(B)
        s.adv_apply()
        a(f"s_add_u32 {sI}, {sI}, 1")
        for f in range(cut, NF):
            reads = []
            if f == cut: reads = [lambda: rdX(0, 0), lambda: rdX(0, 1), lambda: rdX(0, 2)]
            reads.append(lambda f=f: rdW(f + LA))
            grp(f, reads)
        assert q.q == q0, (q.q, q0)
        a(f"s_branch {L}")
        if hook:
            a.lab(H); hook[1](); a(f"s_branch {B}")
        a.lab(F)
        q.q = qcut
        for f in range(cut, NF): grp(f, [])
        a("s_nop 7")
        s.stamp()

    def att(s):
        a = s.a; q = LQ(a)
        def S(par, qt, kt=0): return vS + par * 24 + qt * 8 + kt * 4
        ring = lambda f: vRING + (f % 4) * 4
        def rd(f):
            f %= 16
            if f < 8:
                q.rd(f"ds_read_b128 {vr(ring(f))}, v{vA0} offset:{(f >> 2)*4096 + (f & 3)*512}", f)
            else:
                dt = f - 8; ad = vA1 if dt % 2 == 0 else vA2
                for sec in range(2):
                    q.rd(f"ds_read_b64_tr_b16 {vr(ring(f) + 2*sec, 2)}, v{ad} offset:{sec*4096 + (dt >> 1)*512}", f)
        a(f"""v_lshrrev_b32 v{vT+2}, 4, v0
        s_lshr_b32 {sT0}, {sWV}, 1
        s_lshl_b32 {sT0}, {sT0}, 13
        s_add_u32 {sT0}, {sT0}, {sSLOT}
        v_bfe_u32 v{vT}, v0, 3, 1
        v_lshrrev_b32 v{vT+1}, 1, v{vT+2}
        v_and_b32 v{vT+3}, 1, v{vT+2}
        v_lshl_or_b32 v{vM}, v{vT+3}, 1, v{vT+1}
        v_xor_b32 v{vM}, v{vM}, v{vT}
        v_lshlrev_b32 v{vM}, 4, v{vM}
        v_lshl_add_u32 v{vM}, v{vT}, 11, v{vM}
        v_and_b32 v{vT}, 7, v0
        v_lshl_add_u32 v{vM}, v{vT}, 6, v{vM}
        v_add_u32 v{vA0}, {sT0}, v{vM}
        v_lshlrev_b32 v{vM}, 11, v{vT+1}
        v_bfe_u32 v{vT}, v0, 2, 3
        v_lshl_add_u32 v{vM}, v{vT}, 6, v{vM}
        v_lshl_add_u32 v{vM}, v{vT+3}, 5, v{vM}
        v_and_b32 v{vT}, 3, v0
        v_lshl_add_u32 v{vM}, v{vT}, 3, v{vM}
        v_add_u32 v{vM}, 16384, v{vM}
        v_xor_b32 v{vT}, 32, v{vM}
        v_add_u32 v{vA1}, {sT0}, v{vM}
        v_add_u32 v{vA2}, {sT0}, v{vT}""")
        for r in range(4): a(f"v_mov_b32 v{vONES+r}, 0x3f803f80")
        for r in range(12): a(f"v_mov_b32 v{vL+r}, 0")
        for r in range(96): a(f"v_mov_b32 v{vACC+r}, 0")
        a("s_waitcnt vmcnt(0)" if True else "")
        a("s_barrier")
        s.stamp()
        def qk(par, f, c0, fill):
            kt, ks = f >> 2, f & 3
            q.need(f)
            for qt in range(3):
                d = S(par, qt, kt)
                a(mfma(d, ring(f), qreg(qt, ks), (c0(qt) if ks == 0 else d)))
                for x in fill[qt]: x()
        def rowmax(par, qt, dst, tmp):
            b = S(par, qt)
            a(f"v_max3_f32 v{dst}, v{b}, v{b+1}, v{b+2}\nv_max3_f32 v{dst}, v{dst}, v{b+3}, v{b+4}\nv_max3_f32 v{dst}, v{dst}, v{b+5}, v{b+6}\nv_max_f32 v{dst}, v{dst}, v{b+7}")
            a(f"v_mov_b32 v{tmp}, v{dst}\ns_nop 1\nv_permlane16_swap_b32 v{dst}, v{tmp}\ns_nop 1\nv_max_f32 v{dst}, v{dst}, v{tmp}")
            a(f"v_mov_b32 v{tmp}, v{dst}\ns_nop 1\nv_permlane32_swap_b32 v{dst}, v{tmp}\ns_nop 1\nv_max_f32 v{dst}, v{dst}, v{tmp}")
        for f in range(3): rd(f)
        for f in range(8):
            qk(0, f, lambda qt: "0", [[lambda f=f: rd(f + 3)] if f + 3 < 8 else [], [], []])
        s.adv_addr()
        a("s_barrier")
        s.adv_apply()
        for f in range(3): rd(f)
        a("s_nop 1")
        for qt in range(3):
            rowmax(0, qt, vM + qt, vM + 4)
            for r in range(8): a(f"v_sub_f32 v{S(0,qt)+r}, v{S(0,qt)+r}, v{vM+qt}")
            for r in range(4): a(f"v_sub_f32 v{vCI+qt*4+r}, 0, v{vM+qt}")
        a(f"s_mov_b32 {sI}, 0")
        q0 = list(q.q)
        def ex(par, i): return lambda: a(f"v_exp_f32 v{vS+par*24+i}, v{vS+par*24+i}")
        def cv(par, pr):
            qt, k = pr // 4, pr % 4; b = S(par, qt)
            return lambda: a(f"v_cvt_pk_bf16_f32 v{b+k}, v{b+2*k}, v{b+2*k+1}")
        def pv(par, f, fill):
            dt = f - 8
            q.need(f)
            for qt in range(3):
                a(mfma(acc(dt, qt), ring(f), S(par, qt), acc(dt, qt)))
                for x in fill[qt]: x()
        def ones(par, qt): a(mfma(vL + qt*4, vONES, S(par, qt), vL + qt*4))
        rare = []
        def step(par):
            nx = par ^ 1
            for f in range(8):
                fill = []
                for qt in range(3):
                    i = f * 3 + qt; x = []
                    if qt == 0: x.append(lambda f=f: rd(f + 3))
                    x.append(ex(par, i))
                    if i >= 2 and i % 2 == 0: x.append(cv(par, i // 2 - 1))
                    fill.append(x)
                qk(nx, f, lambda qt: vCI + qt*4, fill)
            ones(par, 0); cv(par, 11)(); ones(par, 1); a("s_nop 0"); ones(par, 2)
            regs = [S(nx, qt, kt) + r for kt in range(2) for qt in range(3) for r in range(4)]
            mx = []
            m0_, m1_ = vM, vM + 1
            mx.append(f"v_max3_f32 v{m0_}, v{regs[0]}, v{regs[1]}, v{regs[2]}")
            mx.append(f"v_max3_f32 v{m1_}, v{regs[3]}, v{regs[4]}, v{regs[5]}")
            rest = regs[6:]
            for i in range(0, len(rest), 2):
                m = m0_ if (i // 2) % 2 == 0 else m1_
                mx.append(f"v_max3_f32 v{m}, v{m}, v{rest[i]}, v{rest[i+1]}")
            mx.append(f"v_max_f32 v{m0_}, v{m0_}, v{m1_}")
            mx.append(f"v_cmp_lt_f32 vcc, {f32(THR)}, v{m0_}")
            mi = iter(mx)
            def nm():
                x = next(mi, None)
                if x: a(x)
            for f in range(8, 16):
                fill = [[], [], []]
                if f == 13:
                    a("s_barrier"); s.adv_apply()
                fill[0].append(lambda f=f: rd(f + 3))
                if f == 12: fill[1].append(lambda: s.adv_addr())
                if f >= 9:
                    fill[1].append(nm); fill[2].append(nm)
                pv(par, f, fill)
            assert next(mi, None) is None
            R_ = a.new("L_rare"); Bk = a.new("L_back")
            a(f"s_cbranch_vccnz {R_}")
            a.lab(Bk)
            rare.append((R_, Bk, nx))
        L = a.new("L_al"); F = a.new("L_af")
        a.lab(L)
        step(0)
        assert q.q == q0
        a(f"s_cmp_eq_u32 {sI}, 7\ns_cbranch_scc1 {F}")
        step(1)
        assert q.q == q0
        a(f"s_add_u32 {sI}, {sI}, 1\ns_branch {L}")
        for (R_, Bk, nx) in rare:
            a.lab(R_)
            a("s_nop 7")
            for qt in range(3):
                rowmax(nx, qt, vM + qt, vM + 4)
                a(f"v_max_f32 v{vM+qt}, 0, v{vM+qt}\nv_sub_f32 v{vM+5}, 0, v{vM+qt}\nv_exp_f32 v{vM+5}, v{vM+5}")
                for r in range(8): a(f"v_sub_f32 v{S(nx,qt)+r}, v{S(nx,qt)+r}, v{vM+qt}")
                for r in range(4): a(f"v_sub_f32 v{vCI+qt*4+r}, v{vCI+qt*4+r}, v{vM+qt}")
                for r in range(4): a(f"v_mul_f32 v{vL+qt*4+r}, v{vL+qt*4+r}, v{vM+5}")
                for dt in range(8):
                    for r in range(4): a(f"v_mul_f32 v{acc(dt,qt)+r}, v{acc(dt,qt)+r}, v{vM+5}")
            a(f"s_nop 1\ns_branch {Bk}")
        a.lab(F)
        for f in range(8, 11): rd(f)
        for i in range(24):
            ex(1, i)()
            if i >= 2 and i % 2 == 0: cv(1, i // 2 - 1)()
        ones(1, 0); cv(1, 11)(); ones(1, 1); a("s_nop 0"); ones(1, 2)
        for f in range(8, 16):
            pv(1, f, [[lambda f=f: rd(f + 3)] if f + 3 < 16 else [], [], []])
        s.next_slot(sSLOT)
        s.stamp()
        for qt in range(3): a(f"v_rcp_f32 v{vM+qt}, v{vL+qt*4}")
        a(f"""v_bfe_u32 v{vT}, v0, 3, 1
        s_mul_i32 {sT0}, {sWV}, 6
        v_add_u32 v{vT}, {sT0}, v{vT}
        v_lshlrev_b32 v{vT}, 10, v{vT}
        v_and_b32 v{vT+1}, 7, v0
        v_lshl_add_u32 v{vT}, v{vT+1}, 6, v{vT}
        v_lshrrev_b32 v{vT+1}, 2, v0
        v_sub_u32 v{vT+1}, 0, v{vT+1}
        v_and_b32 v{vT+1}, 3, v{vT+1}
        v_lshrrev_b32 v{vT+2}, 5, v0
        v_bfe_u32 v{vT+3}, v0, 4, 1
        v_lshl_or_b32 v{vT+2}, v{vT+3}, 1, v{vT+2}
        v_xor_b32 v{vT+1}, v{vT+1}, v{vT+2}
        v_lshl_add_u32 v{vT}, v{vT+1}, 4, v{vT}
        v_add_u32 v{vT+1}, 4096, v{vT}""")
        s.head_of_sel(sT0)
        a(f"""s_lshl_b32 {sT1}, {sPM}, 5
        s_add_u32 {sT0}, {sT0}, {sT1}
        s_mul_i32 {sT0}, {sT0}, 49152
        s_add_u32 {sT0}, {sT0}, {WS_O}
        s_add_u32 {sT1}, {sT0}, 24576""")
        s.pack_acc(8, lambda mt: f"v{vM+mt}", qreg)
        for mt in range(3):
            for ks in range(4):
                a(f"buffer_store_dwordx4 {vr(qreg(mt, ks))}, v{vT + (1 if mt == 2 else 0)}, {srd(SWS)}, {sT0 if ks < 2 else sT1} offen offset:{(mt & 1)*2048 + (ks & 1)*512} sc1")
        a(f"s_lshl_b32 {sT0}, 1, {sSEL}\ns_or_b32 {sPEND}, {sPEND}, {sT0}")

    def wsq_addr(s):
        s.a(f"""s_mul_i32 {sT0}, {sWG}, 49152
        s_mul_i32 {sT1}, {sWV}, 12288
        s_add_u32 {sT0}, {sT0}, {sT1}
        s_add_u32 {sT0}, {sT0}, {WS_Q}
        v_lshlrev_b32 v{vT}, 4, v0""")

    def compute(s, kname, has_main, tailcfg):
        a = s.a
        CN = f"{kname}_cnext"; CA = f"{kname}_catt"; CT = f"{kname}_ctail"; CE = f"{kname}_cend"
        a(f"""s_lshl_b32 {sFOFF}, {sPM}, 1
        s_add_u32 {sFOFF}, {sFOFF}, {sG}
        s_lshl_b32 {sFOFF}, {sFOFF}, 2
        s_add_u32 {sFOFF}, {sFOFF}, 128
        s_lshl_b32 {sFSH}, {sHS}, 2
        s_mov_b32 {sPEND}, 0""")
        a.lab(CN)
        s.decode()
        if tailcfg is not None: a(f"s_cmp_eq_u32 {sCODE}, 6\ns_cbranch_scc1 {CT}")
        if has_main:
            a(f"s_cmp_eq_u32 {sCODE}, 0\ns_cbranch_scc1 {CE}")
            a(f"s_cmp_eq_u32 {sCODE}, 3\ns_cbranch_scc1 {CA}")
            G = a.new("L_cg")
            a(f"s_cmp_lg_u32 {sCODE}, 4\ns_cbranch_scc1 {G}")
            s.wsq_addr()
            a("s_waitcnt vmcnt(0)")
            for i in range(12):
                if i % 4 == 0 and i: a(f"s_add_u32 {sT0}, {sT0}, 4096")
                a(f"buffer_load_dwordx4 {vr(vQ + 4*i)}, v{vT}, {srd(SWS)}, {sT0} offen offset:{(i % 4)*1024} sc1")
            a(f"s_branch {CA}")
            a.lab(G)
            a(f"s_cmp_eq_u32 {sCODE}, 5\ns_cselect_b32 {sN}, 24, 16")
            s.gemm_addr(False)
            for r in range(96): a(f"v_mov_b32 v{vACC+r}, 0")
            def hk():
                a("s_waitcnt vmcnt(0)\ns_barrier"); s.signal()
            s.gemm_loop(False, (4, hk) if s.mode == "fused" else None)
            if s.mode == "fused":
                O5 = a.new("L_o5")
                a(f"s_cmp_eq_u32 {sCODE}, 5\ns_cbranch_scc1 {O5}")
            a(f"s_mov_b32 {sT2}, {f32(QSCALE)}")
            s.pack_acc(8, lambda mt: sT2, qreg)
            a(f"s_cmp_eq_u32 {sCODE}, 1\ns_cbranch_scc1 {CN}")
            s.wsq_addr()
            for i in range(12):
                if i % 4 == 0 and i: a(f"s_add_u32 {sT0}, {sT0}, 4096")
                a(f"buffer_store_dwordx4 {vr(vQ + 4*i)}, v{vT}, {srd(SWS)}, {sT0} offen offset:{(i % 4)*1024}")
            a(f"s_branch {CN}")
            if s.mode == "fused":
                a.lab(O5)
                a(f"""s_mul_i32 {sT0}, {sWG}, 98304
                s_mul_i32 {sT1}, {sWV}, 12288
                s_add_u32 {sT0}, {sT0}, {sT1}
                s_add_u32 {sT0}, {sT0}, {WS_P}
                v_lshlrev_b32 v{vT}, 4, v0""")
                for i in range(24):
                    if i == 12: a(f"s_add_u32 {sT0}, {sT0}, {49152 - 8192}")
                    elif i % 4 == 0 and i: a(f"s_add_u32 {sT0}, {sT0}, 4096")
                    a(f"buffer_store_dwordx4 {vr(vACC + 4*i)}, v{vT}, {srd(SWS)}, {sT0} offen offset:{(i % 4)*1024} sc1")
                a(f"s_or_b32 {sPEND}, {sPEND}, 4\ns_nop 0")
                a(f"s_branch {CN}")
            a.lab(CA)
            s.att()
            a(f"s_branch {CN}")
        if tailcfg is not None:
            a.lab(CT)
            if tailcfg["sync"]:
                a("s_waitcnt vmcnt(0)\ns_barrier"); s.signal()
                s.stamp()
            a(f"s_mov_b32 {sN}, {tailcfg['n']}")
            s.gemm_addr(True)
            for r in range(48): a(f"v_mov_b32 v{vACC+r}, 0")
            vP = vACC + 48
            def hk():
                a("s_barrier")
                a(f"s_xor_b32 {sFOFF}, {sFOFF}, 4\ns_lshl_b32 {sPEND}, 4, {sFSH}\nv_mov_b32 v{vT+1}, 0")
                s.poll(sFOFF, sPEND, vT, vT + 1)
                a(f"""s_and_b32 {sT0}, {sWG}, 0xf7
                s_mul_i32 {sT0}, {sT0}, 98304
                s_mul_i32 {sT1}, {sWV}, 12288
                s_add_u32 {sT0}, {sT0}, {sT1}
                s_mul_i32 {sT1}, {sG}, 49152
                s_add_u32 {sT0}, {sT0}, {sT1}
                s_add_u32 {sT0}, {sT0}, {WS_P}
                v_lshlrev_b32 v{vT}, 4, v0""")
                for i in range(24):
                    if i == 12: a(f"s_add_u32 {sT0}, {sT0}, {8*98304 - 8192}")
                    elif i % 4 == 0 and i: a(f"s_add_u32 {sT0}, {sT0}, 4096")
                    a(f"buffer_load_dwordx4 {vr(vP + 4*i)}, v{vT}, {srd(SWS)}, {sT0} offen offset:{(i % 4)*1024} sc1")
            s.gemm_loop(True, (tailcfg["n"] - 4, hk) if tailcfg["sync"] else None)
            if tailcfg["sync"]:
                a("s_waitcnt vmcnt(0)")
                for r in range(48): a(f"v_add_f32 v{vACC+r}, v{vACC+r}, v{vP+r}")
                for r in range(48): a(f"v_add_f32 v{vACC+r}, v{vACC+r}, v{vP+48+r}")
            dst = lambda mt, pr: vS + (mt * 2 + pr) * 4
            s.pack_acc(4, None, dst)
            a(f"""v_and_b32 v{vT}, 15, v0
            v_lshlrev_b32 v{vT}, 12, v{vT}
            v_lshrrev_b32 v{vT+2}, 5, v0
            v_bfe_u32 v{vT+3}, v0, 4, 1
            v_lshl_or_b32 v{vT+2}, v{vT+3}, 1, v{vT+2}
            v_lshl_add_u32 v{vT}, v{vT+2}, 4, v{vT}
            s_mul_i32 {sT0}, {sMB}, 192
            s_mul_i32 {sT1}, {sWV}, 48
            s_add_u32 {sT0}, {sT0}, {sT1}
            s_lshl_b32 {sT0}, {sT0}, 12
            s_lshl_b32 {sT1}, {sP}, 11
            s_add_u32 {sT0}, {sT0}, {sT1}
            s_lshl_b32 {sT1}, {sHS}, 8
            s_add_u32 {sT0}, {sT0}, {sT1}
            s_lshl_b32 {sT1}, {sG}, 7
            s_add_u32 {sT0}, {sT0}, {sT1}""")
            for mt in range(3):
                if mt: a(f"s_add_u32 {sT0}, {sT0}, 65536")
                for pr in range(2):
                    a(f"buffer_store_dwordx4 {vr(dst(mt, pr))}, v{vT}, {srd(SOUT)}, {sT0} offen offset:{pr*64}")
        a.lab(CE)
        if s.stamps: a("s_waitcnt vmcnt(0)")
        s.stamp()
        s.stamp_dump()
        a.lab(f"{kname}_end")
        a("s_endpgm")

    def kernel(s, kname, progs, has_main, tailcfg):
        s.setup(kname, progs)
        s.compute(kname, has_main, tailcfg)
        s.loader(kname, has_main, tailcfg)

    def desc(s, kname):
        return f""".amdhsa_kernel {kname}
  .amdhsa_next_free_vgpr 256
  .amdhsa_next_free_sgpr 102
  .amdhsa_accum_offset 256
  .amdhsa_group_segment_fixed_size 0
  .amdhsa_kernarg_size 104
  .amdhsa_user_sgpr_count 2
  .amdhsa_user_sgpr_kernarg_segment_ptr 1
  .amdhsa_system_sgpr_workgroup_id_x 1
.end_amdhsa_kernel"""

    def build(s):
        def prog(l):
            v = 0
            for i, c in enumerate(l): v |= c << (4 * i)
            return v
        hdr = []
        K = NAME + "_kernel"
        if s.mode == "fused":
            hdr.append("; @launch grid=(256,1,1) block=(512,1,1) lds=163840")
            s.kernel(K, (prog([1, 3, 9, 11, 5, 6]), prog([10, 1, 3, 5, 12, 6])), True, dict(sync=True, kst=48, n=16))
            ks = [K]
        else:
            K2 = "oproj_kernel"
            hdr.append(f"; @launch kernel={K} grid=(256,1,1) block=(512,1,1) lds=163840")
            hdr.append(f"; @launch kernel={K2} grid=(256,1,1) block=(512,1,1) lds=163840")
            s.kernel(K, (prog([1, 3, 9, 11]), prog([10, 1, 3, 12])), True, None)
            st = s.stamps; s.stamps = False
            s.kernel(K2, (6, 6), False, dict(sync=False, kst=0, n=64))
            s.stamps = st
            ks = [K, K2]
        if s.o.get("nocomp"):
            s.a.l = [x for x in s.a.l if not re.match(r"\s+(v_mfma|ds_read|v_exp|v_cvt_pk|v_max3|s_cbranch_vccnz)", x)]
        if s.o.get("nostore"):
            s.a.l = [x for x in s.a.l if not re.match(r"\s+buffer_store_dwordx4", x)]
        if s.o.get("nomfma"):
            s.a.l = [x for x in s.a.l if not re.match(r"\s+(v_mfma|v_exp|v_cvt_pk|v_max3|s_cbranch_vccnz)", x)]
        if s.o.get("nolds"):
            s.a.l = [x for x in s.a.l if not re.match(r"\s+(ds_read|s_cbranch_vccnz)", x)]
        if s.o.get("noload"):
            s.a.l = [x for x in s.a.l if not (re.match(r"\s+buffer_load.* lds", x) or "s_cbranch_vccnz" in x)]
        out = hdr + ['.amdgcn_target "amdgcn-amd-amdhsa--gfx950"', ".text"] + s.a.l
        out += ['.section .rodata,"a"']
        for k in ks: out += [".p2align 6", s.desc(k)]
        return "\n".join(out) + "\n"

if __name__ == "__main__":
    import argparse, json
    ap = argparse.ArgumentParser()
    ap.add_argument("-o", default="k.s"); ap.add_argument("--mode", default="fused"); ap.add_argument("--stamps", action="store_true")
    ap.add_argument("--opts", default="{}")
    A = ap.parse_args()
    open(A.o, "w").write(Gen(A.mode, A.stamps, json.loads(A.opts)).build())
```

```python
import sys, re, math
NAME = "concat_heads__mha_block_cached__gqa_block_cached__near_ridge"

SLOT = 40960
NSLOT = 4
WS_Q = 0x0
WS_O = 0x2000000
WS_P = 0x4000000
WS_T = 0x8000000
WS_SIZE = 308281344
THR = 8.0
QSCALE = math.log2(math.e) / math.sqrt(128.0)

import struct
def f32(x): return "0x%08x" % struct.unpack("<I", struct.pack("<f", x))[0]

class Asm:
    def __init__(s): s.l = []; s.uid = 0
    def __call__(s, t):
        for x in t.split("\n"):
            x = x.strip()
            if x: s.l.append("    " + x)
    def lab(s, n): s.l.append(n + ":")
    def c(s, t): s.l.append("    ; " + t)
    def new(s, p): s.uid += 1; return f"{p}_{s.uid}"

class LQ:
    def __init__(s, a): s.a = a; s.q = []
    def rd(s, ins, tag):
        s.a(ins); s.q.append(tag); assert len(s.q) <= 15, "lgkm overflow"
    def need(s, tag):
        idx = [i for i, t in enumerate(s.q) if t == tag]
        if not idx: return
        n = len(s.q) - 1 - idx[-1]
        s.a(f"s_waitcnt lgkmcnt({n})"); s.q = s.q[idx[-1] + 1:]
    def drain(s):
        s.a("s_waitcnt lgkmcnt(0)"); s.q = []

def vr(b, n=4): return f"v[{b}:{b+n-1}]"
def mfma(d, a_, b_, c): return f"v_mfma_f32_16x16x32_bf16 {vr(d)}, {vr(a_)}, {vr(b_)}, {c if isinstance(c, str) else vr(c)}"

sWG, sWV, sP, sG, sMB, sHS, sROT, sPM = "s2", "s3", "s4", "s5", "s6", "s7", "s8", "s9"
sPROG, sSEL = "s10", "s11"
SA, SB, SK, SV, SWS, SOUT, SDBG = 28, 32, 36, 40, 44, 48, 52
def srd(b): return f"s[{b}:{b+3}]"
sSLOT, sI, sN, sT0, sT1, sT2, sCODE = "s56", "s57", "s58", "s59", "s60", "s61", "s62"
sFIRST, sKST, sMASK, sROFF, sBA, sMA, sJA, sBB, sMBm, sJB, sPOLL, sA, sB_, sM0, sK0, sK1, sTILE = \
    "s63", "s64", "s65", "s66", "s67", "s68", "s69", "s70", "s71", "s72", "s73", "s74", "s75", "s76", "s77", "s78", "s79"
sDL, sPEND, sFOFF, sFSH, sHEAD = "s63", "s64", "s65", "s66", "s67"
sSTAMP = 80

vLANE, vA0, vA1, vA2 = 0, 1, 2, 3
vT = 4
vONES = 8
vCI = 12
vL = 24
vRING = 36
vM = 52
vS = 64
vACC = 112
vQ = 208
def acc(nt, mt): return vACC + (nt * 3 + mt) * 4
def qreg(mt, ks): return vQ + (mt * 4 + ks) * 4

class Gen:
    def __init__(s, mode="fused", stamps=False, opts=None):
        s.mode = mode; s.stamps = stamps; s.a = Asm(); s.o = opts or {}
        s.nst = 0
        global WS_Q, WS_O, WS_P
        base = int(s.o.get("wsbase", 0))
        WS_Q = base; WS_O = base + 0x1000000; WS_P = base + 0x3000000
        if base == 0: WS_O = 0x2000000; WS_P = 0x4000000

    def stamp(s):
        if not s.stamps: return
        a = s.a
        a("s_memrealtime s[100:101]\ns_waitcnt lgkmcnt(0)")
        for i in range(sSTAMP + 15, sSTAMP, -1): a(f"s_mov_b32 s{i}, s{i-1}")
        a(f"s_mov_b32 s{sSTAMP}, s100")

    def stamp_dump(s):
        if not s.stamps: return
        a = s.a
        if "dbgwg" in s.o:
            L = a.new("L_sd")
            a(f"s_cmp_lg_u32 {sWG}, {s.o['dbgwg']}\ns_cbranch_scc1 {L}\ns_cmp_lg_u32 {sWV}, 0\ns_cbranch_scc1 {L}")
            a(f"s_memtime s[100:101]\ns_waitcnt lgkmcnt(0)\ns_sub_u32 s{sSTAMP+15}, s100, s99")
            a(f"v_mov_b32 v{vT}, 0")
            for i in range(16):
                if i < 15: a(f"s_sub_u32 {sT0}, s{sSTAMP}, s{sSTAMP+i}")
                else: a(f"s_mov_b32 {sT0}, s{sSTAMP+i}")
                a(f"v_mov_b32 v{vT+1}, {sT0}\nbuffer_store_dword v{vT+1}, v{vT}, {srd(SDBG)}, 0 offen offset:{4*i}\ns_nop 1")
            a("s_waitcnt vmcnt(0)")
            a.lab(L)
            return
        a(f"s_lshl_b32 {sT0}, {sWG}, 3\ns_add_u32 {sT0}, {sT0}, {sWV}\ns_lshl_b32 {sT0}, {sT0}, 6\ns_add_u32 {sT0}, {sT0}, {WS_T}")
        a(f"v_mov_b32 v{vT}, 0")
        for i in range(16):
            a(f"v_mov_b32 v{vT+1}, s{sSTAMP+i}\nbuffer_store_dword v{vT+1}, v{vT}, {srd(SWS)}, {sT0} offen offset:{4*i}\ns_nop 1")
        a("s_waitcnt vmcnt(0)")

    def setup(s, kname, progs):
        a = s.a
        a.l.append(f".globl {kname}\n.p2align 8\n.type {kname},@function\n{kname}:")
        a(f"""s_cmp_ge_u32 {sWG}, 256
        s_cbranch_scc1 {kname}_end
        s_and_b32 {sT0}, {sWG}, 7
        s_lshr_b32 {sP}, {sT0}, 2
        s_mul_i32 {sT1}, {sP}, 40
        s_add_u32 s60, s0, {sT1}
        s_addc_u32 s61, s1, 0
        s_load_dwordx8 s[12:19], s[60:61], 0
        s_load_dwordx2 s[20:21], s[60:61], 32
        s_load_dwordx2 s[22:23], s[0:1], 96
        s_load_dwordx4 s[24:27], s[0:1], 80
        v_lshrrev_b32 v1, 6, v0
        v_and_b32 v{vLANE}, 63, v0
        v_readfirstlane_b32 {sWV}, v1
        s_bfe_u32 {sG}, {sWG}, 0x10003
        s_lshr_b32 {sI}, {sWG}, 4
        s_and_b32 {sN}, {sI}, 3
        s_lshr_b32 {sI}, {sI}, 2
        s_add_u32 {sROT}, {sN}, {sI}
        s_and_b32 {sROT}, {sROT}, 3
        s_and_b32 {sMB}, {sT0}, 1
        s_lshl_b32 {sMB}, {sMB}, 2
        s_add_u32 {sMB}, {sMB}, {sN}
        s_bfe_u32 {sHS}, {sT0}, 0x10001
        s_lshl_b32 {sHS}, {sHS}, 2
        s_add_u32 {sHS}, {sHS}, {sI}
        s_lshl_b32 {sPM}, {sP}, 3
        s_add_u32 {sPM}, {sPM}, {sMB}
        s_cmp_eq_u32 {sG}, 0
        s_cselect_b32 {sPROG}, {hex(progs[0])}, {hex(progs[1])}""" if progs[0] == progs[1] else f"""s_cmp_ge_u32 {sWG}, 256
        s_cbranch_scc1 {kname}_end
        s_and_b32 {sT0}, {sWG}, 7
        s_lshr_b32 {sP}, {sT0}, 2
        s_mul_i32 {sT1}, {sP}, 40
        s_add_u32 s60, s0, {sT1}
        s_addc_u32 s61, s1, 0
        s_load_dwordx8 s[12:19], s[60:61], 0
        s_load_dwordx2 s[20:21], s[60:61], 32
        s_load_dwordx2 s[22:23], s[0:1], 96
        s_load_dwordx4 s[24:27], s[0:1], 80
        v_lshrrev_b32 v1, 6, v0
        v_and_b32 v{vLANE}, 63, v0
        v_readfirstlane_b32 {sWV}, v1
        s_bfe_u32 {sG}, {sWG}, 0x10003
        s_lshr_b32 {sI}, {sWG}, 4
        s_and_b32 {sN}, {sI}, 3
        s_lshr_b32 {sI}, {sI}, 2
        s_add_u32 {sROT}, {sN}, {sI}
        s_and_b32 {sROT}, {sROT}, 3
        s_and_b32 {sMB}, {sT0}, 1
        s_lshl_b32 {sMB}, {sMB}, 2
        s_add_u32 {sMB}, {sMB}, {sN}
        s_bfe_u32 {sHS}, {sT0}, 0x10001
        s_lshl_b32 {sHS}, {sHS}, 2
        s_add_u32 {sHS}, {sHS}, {sI}
        s_lshl_b32 {sPM}, {sP}, 3
        s_add_u32 {sPM}, {sPM}, {sMB}
        s_mov_b32 {sPROG}, {hex(progs[0])}
        s_cmp_eq_u32 {sG}, 0
        s_cselect_b32 {sPROG}, {sPROG}, {hex(progs[1])}""")
        if "progs" in s.o and kname.startswith("concat"):
            a(f"s_mov_b32 {sPROG}, {s.o['progs'][0]}\ns_cmp_eq_u32 {sG}, 0\ns_cselect_b32 {sPROG}, {sPROG}, {s.o['progs'][1]}")
            a(f"s_cmp_eq_u32 {sPROG}, 0\ns_cbranch_scc1 {kname}_end")
        if "spinto" in s.o: a("s_memrealtime s[98:99]")
        a(f"s_mov_b32 {sSLOT}, 0\ns_waitcnt lgkmcnt(0)")
        for (b, lo, size) in [(SA, 12, 3145728), (SB, 18, 8388608), (SK, 14, 67108864), (SV, 16, 67108864),
                              (SWS, 22, WS_SIZE), (SOUT, 24, 6291456), (SDBG, 26, 256)]:
            a(f"s_mov_b32 s{b}, s{lo}\ns_mov_b32 s{b+1}, s{lo+1}\ns_mov_b32 s{b+2}, {size}\ns_mov_b32 s{b+3}, 0x20000")
        if s.stamps:
            for i in range(16): a(f"s_mov_b32 s{sSTAMP+i}, 0")
            a("s_memtime s[100:101]\ns_waitcnt lgkmcnt(0)\ns_mov_b32 s99, s100")
        s.stamp()
        a(f"s_cmp_ge_u32 {sWV}, 4\ns_cbranch_scc1 {kname}_loader")

    def next_slot(s, reg):
        s.a(f"s_add_u32 {reg}, {reg}, {SLOT}\ns_cmp_eq_u32 {reg}, {SLOT*NSLOT}\ns_cselect_b32 {reg}, 0, {reg}")

    def decode(s):
        s.a(f"s_and_b32 {sCODE}, {sPROG}, 7\ns_bfe_u32 {sSEL}, {sPROG}, 0x10003\ns_lshr_b32 {sPROG}, {sPROG}, 4")

    def head_of_sel(s, dst):
        s.a(f"s_lshl_b32 {dst}, {sSEL}, 1\ns_add_u32 {dst}, {dst}, {sG}\ns_lshl_b32 {dst}, {dst}, 3\ns_add_u32 {dst}, {dst}, {sHS}")

    def poll(s, off_reg, mask_reg, vtmp, vzero):
        a = s.a; L = a.new("L_poll"); D = a.new("L_polld")
        a(f"s_mov_b32 {sT2}, 0x40000")
        a.lab(L)
        a(f"""buffer_load_dword v{vtmp}, v{vzero}, {srd(SDBG)}, {off_reg} offen sc1
        s_waitcnt vmcnt(0)
        v_readfirstlane_b32 {sT0}, v{vtmp}
        s_and_b32 {sT0}, {sT0}, {mask_reg}
        s_cmp_eq_u32 {sT0}, {mask_reg}
        s_cbranch_scc1 {D}
        s_sleep 4
        s_sub_u32 {sT2}, {sT2}, 1
        s_cmp_lg_u32 {sT2}, 0
        s_cbranch_scc1 {L}""")
        a.lab(D)

    def unit_end(s, n):
        a = s.a; L = a.new("L_ue")
        s.next_slot(sSLOT)
        a(f"s_cmp_eq_u32 {sFIRST}, 0\ns_mov_b32 {sFIRST}, 0\ns_cbranch_scc0 {L}\ns_waitcnt vmcnt({n})\ns_barrier")
        a.lab(L)

    def loader_gemm_loop(s, kname, tail, polls):
        a = s.a; L = a.new("L_lg")
        vRA, vRB = 10, 11
        a(f"s_mov_b32 {sI}, 0")
        a.lab(L)
        if polls:
            S = a.new("L_nop")
            a(f"s_and_b32 {sT0}, {sI}, 7\ns_or_b32 {sT0}, {sT0}, {sPOLL}\ns_cmp_lg_u32 {sT0}, 0\ns_cbranch_scc1 {S}")
            a(f"""s_add_u32 {sT0}, {sKST}, {sI}
            s_lshr_b32 {sT0}, {sT0}, 3
            s_lshr_b32 {sT1}, {sT0}, 2
            s_lshl_b32 {sB_}, 0x1111, {sT1}
            s_and_b32 {sT1}, {sT0}, 1
            s_lshl_b32 {sT1}, {sT1}, 4
            s_lshl_b32 {sB_}, {sB_}, {sT1}
            s_bfe_u32 {sT0}, {sT0}, 0x10001
            s_lshl_b32 {sA}, {sPM}, 1
            s_add_u32 {sA}, {sA}, {sT0}
            s_lshl_b32 {sA}, {sA}, 2
            s_add_u32 {sA}, {sA}, 128""")
            s.poll(sA, sB_, 14, 15)
            a.lab(S)
        a(f"""s_add_u32 {sT0}, {sI}, {sROFF}
        s_and_b32 {sT0}, {sT0}, {sMASK}
        s_andn2_b32 {sT1}, {sI}, {sMASK}
        s_add_u32 {sT0}, {sT0}, {sT1}
        s_add_u32 {sT0}, {sT0}, {sKST}
        s_mul_i32 {sA}, {sT0}, {sMA}
        s_add_u32 {sA}, {sA}, {sBA}
        s_mul_i32 {sB_}, {sT0}, {sMBm}
        s_add_u32 {sB_}, {sB_}, {sBB}
        s_lshl_b32 {sT1}, {sWV}, 10
        s_add_u32 {sM0}, {sSLOT}, {sT1}""")
        fa = s.o.get("fa", "sc1"); fb = s.o.get("fb", "")
        for j in range(6):
            a(f"s_add_u32 m0, {sM0}, {j*4096}")
            if j: a(f"s_add_u32 {sA}, {sA}, {sJA}")
            else: a("s_nop 0")
            a(f"buffer_load_dwordx4 v{vRA}, {srd(SA)}, {sA} offen {fa} lds")
        if tail:
            for oo in range(2):
                a(f"s_add_u32 m0, {sM0}, {24576 + oo*4096}")
                if oo: a(f"s_add_u32 {sB_}, {sB_}, {sJB}")
                else: a("s_nop 0")
                a(f"buffer_load_dwordx4 v{vRB}, {srd(SB)}, {sB_} offen {fb} lds")
            n = 8
        else:
            a(f"s_add_u32 {sM0}, {sM0}, {sT1}")
            for oo in range(2):
                for hf in range(2):
                    a(f"s_add_u32 m0, {sM0}, {24576 + oo*8192 + hf*(1024-128)}")
                    if oo and not hf: a(f"s_add_u32 {sB_}, {sB_}, {sJB}")
                    else: a("s_nop 0")
                    a(f"buffer_load_dwordx4 v{vRB}, {srd(SB)}, {sB_} offen offset:{hf*128} {fb} lds")
            n = 10
        s.unit_end(n)
        a(f"s_add_u32 {sI}, {sI}, 1\ns_cmp_lt_u32 {sI}, {sN}\ns_cbranch_scc1 {L}")

    def loader_o_params(s, kst, n, tail):
        a = s.a
        a(f"""s_mov_b32 s{SA}, s22
        s_mov_b32 s{SA+1}, s23
        s_mov_b32 s{SA+2}, {WS_SIZE}
        s_mov_b32 s{SB}, s20
        s_mov_b32 s{SB+1}, s21
        v_mov_b32 v10, v8
        v_mov_b32 v11, v9
        s_mul_i32 {sBA}, {sPM}, {32*49152}
        s_add_u32 {sBA}, {sBA}, {WS_O}
        s_mov_b32 {sMA}, 24576
        s_mov_b32 {sJA}, 4096
        s_lshl_b32 {sBB}, {sHS}, 8
        s_mov_b32 {sMBm}, {64*2048}
        s_mov_b32 {sJB}, {32*2048}
        s_mov_b32 {sMASK}, 7
        s_lshl_b32 {sROFF}, {sROT}, 1
        s_mov_b32 {sN}, {n}
        s_mov_b32 {sPOLL}, 0""")
        if isinstance(kst, int): a(f"s_mov_b32 {sKST}, {kst}")
        else: a(kst)
        if tail: a(f"s_lshl_b32 {sT0}, {sG}, 7\ns_add_u32 {sBB}, {sBB}, {sT0}")

    def loader(s, kname, has_main, tailcfg):
        a = s.a
        a.lab(f"{kname}_loader")
        a(f"s_sub_u32 {sWV}, {sWV}, 4\ns_mov_b32 {sFIRST}, 1")
        a(f"""v_lshrrev_b32 v1, 5, v0
        v_lshlrev_b32 v1, 6, v1
        v_bfe_u32 v2, v0, 2, 3
        v_and_b32 v3, 3, v0
        s_lshl_b32 {sT0}, {sWV}, 3
        v_add_u32 v4, {sT0}, v2
        v_mov_b32 v15, 0""")
        a(f"""v_lshrrev_b32 v5, 2, v4
        v_sub_u32 v5, 0, v5
        v_and_b32 v5, 3, v5
        v_xor_b32 v5, v5, v3
        v_lshlrev_b32 v5, 4, v5
        v_lshlrev_b32 v6, 11, v4
        v_add3_u32 v6, v6, v5, v1""")
        a(f"""s_and_b32 {sT0}, {sWV}, 1
        s_lshl_b32 {sT1}, {sT0}, 1
        v_xor_b32 v5, {sT1}, v3
        v_lshlrev_b32 v5, 4, v5
        v_add_u32 v5, v5, v1
        v_lshl_add_u32 v7, v4, 13, v5
        v_lshl_add_u32 v9, v4, 11, v5
        s_lshl_b32 {sT1}, {sWV}, 10
        v_lshlrev_b32 v8, 4, v0
        v_add_u32 v8, {sT1}, v8""")
        a(f"""v_xor_b32 v5, {sT0}, v3
        v_lshlrev_b32 v5, 4, v5
        v_add_u32 v5, v5, v1
        v_lshl_add_u32 v12, v4, 8, v5
        v_lshrrev_b32 v5, 2, v2
        v_lshlrev_b32 v5, 1, v5
        v_xor_b32 v5, v5, v3
        v_lshlrev_b32 v5, 4, v5
        v_add_u32 v5, v5, v1
        v_lshl_add_u32 v13, v4, 8, v5
        v_mov_b32 v10, v6
        v_mov_b32 v11, v7""")
        LN = f"{kname}_lnext"; LG = f"{kname}_lgemm"; LA = f"{kname}_latt"; LO = f"{kname}_lomid"; LT = f"{kname}_ltail"; LE = f"{kname}_lend"
        a.lab(LN)
        s.decode()
        if tailcfg is not None:
            a(f"s_cmp_eq_u32 {sCODE}, 6\ns_cbranch_scc1 {LT}")
        if has_main:
            a(f"s_cmp_eq_u32 {sCODE}, 0\ns_cbranch_scc1 {LE}")
            if s.mode == "fused": a(f"s_cmp_eq_u32 {sCODE}, 5\ns_cbranch_scc1 {LO}")
            a(f"s_cmp_ge_u32 {sCODE}, 3\ns_cbranch_scc1 {LA}")
            s.head_of_sel(sT0)
            a(f"""s_mul_i32 {sBA}, {sMB}, {192*2048}
            s_mov_b32 {sMA}, 128
            s_mov_b32 {sJA}, 65536
            s_lshl_b32 {sBB}, {sT0}, 8
            s_mov_b32 {sMBm}, {64*8192}
            s_mov_b32 {sJB}, {32*8192}
            s_mov_b32 {sMASK}, 15
            s_lshl_b32 {sROFF}, {sROT}, 2
            s_lshl_b32 {sT0}, {sG}, 1
            s_add_u32 {sROFF}, {sROFF}, {sT0}
            s_mov_b32 {sKST}, 0
            s_mov_b32 {sN}, 16
            s_mov_b32 {sPOLL}, 1""")
            a.lab(LG)
            s.loader_gemm_loop(kname, False, s.mode == "fused")
            a(f"s_branch {LN}")
            if s.mode == "fused":
                a.lab(LO)
                s.loader_o_params(f"s_sub_u32 {sT0}, 1, {sG}\ns_mul_i32 {sKST}, {sT0}, 24", 24, False)
                a(f"s_branch {LG}")
            a.lab(LA)
            s.head_of_sel(sT0)
            a(f"""s_lshl_b32 {sT1}, {sMB}, 6
            s_add_u32 {sT0}, {sT0}, {sT1}
            s_lshl_b32 {sK0}, {sT0}, 17
            s_lshr_b32 {sTILE}, {sWG}, {s.o.get("rotsh", 4)}
            s_and_b32 {sTILE}, {sTILE}, 15
            s_lshl_b32 {sTILE}, {sTILE}, 13
            s_mov_b32 {sI}, 0""")
            if not s.o.get("krot", True): a(f"s_mov_b32 {sTILE}, 0")
            fk = s.o.get("fk", "nt")
            def kv(sr, vo, base):
                a(f"s_add_u32 {sA}, {sK0}, {sTILE}\ns_add_u32 {sB_}, {sA}, {4194304}")
                for it in range(2):
                    for hf in range(2):
                        a(f"s_add_u32 m0, {sM0}, {base + it*8192 + hf*(1024-128)}\ns_nop 0")
                        a(f"buffer_load_dwordx4 v{vo}, {srd(sr)}, {sA if it == 0 else sB_} offen offset:{hf*128} {fk} lds")
            def m0base(): a(f"s_lshl_b32 {sT1}, {sWV}, 11\ns_add_u32 {sM0}, {sSLOT}, {sT1}")
            m0base(); kv(SK, 12, 0); s.unit_end(4)
            L = a.new("L_la"); a.lab(L)
            m0base()
            a(f"s_mov_b32 {sK1}, {sTILE}\ns_add_u32 {sTILE}, {sTILE}, 8192\ns_and_b32 {sTILE}, {sTILE}, 0x1ffff")
            kv(SK, 12, 0)
            a(f"s_mov_b32 {sT0}, {sTILE}\ns_mov_b32 {sTILE}, {sK1}")
            a(f"s_mov_b32 {sK1}, {sT0}")
            kv(SV, 13, 16384)
            a(f"s_mov_b32 {sTILE}, {sK1}")
            s.unit_end(8)
            a(f"s_add_u32 {sI}, {sI}, 1\ns_cmp_lt_u32 {sI}, 15\ns_cbranch_scc1 {L}")
            m0base(); kv(SV, 13, 16384); s.unit_end(4)
            a(f"s_branch {LN}")
        if tailcfg is not None:
            a.lab(LT)
            if tailcfg["sync"]:
                a(f"s_waitcnt vmcnt(0)\ns_barrier\ns_barrier\ns_mov_b32 {sFIRST}, 1")
            s.loader_o_params(tailcfg["kst"], tailcfg["n"], True)
            s.loader_gemm_loop(kname, True, tailcfg["sync"])
        a.lab(LE)
        a("s_waitcnt vmcnt(0)\ns_barrier")
        s.stamp()
        if s.stamps: a(f"s_add_u32 {sWV}, {sWV}, 4")
        s.stamp_dump()
        a("s_endpgm")

    def adv_addr(s):
        a = s.a
        a(f"s_mov_b32 {sDL}, {sSLOT}")
        s.next_slot(sSLOT)
        a(f"s_sub_u32 {sDL}, {sSLOT}, {sDL}")
    def adv_apply(s):
        for r in (vA0, vA1, vA2): s.a(f"v_add_u32 v{r}, {sDL}, v{r}")

    def pack_acc(s, nts, scale, dst):
        a = s.a
        for mt in range(3):
            for pr in range(nts // 2):
                d = dst(mt, pr); x = acc(2 * pr, mt); y = acc(2 * pr + 1, mt)
                if scale is not None:
                    for r in range(4): a(f"v_mul_f32 v{x+r}, {scale(mt)}, v{x+r}")
                    for r in range(4): a(f"v_mul_f32 v{y+r}, {scale(mt)}, v{y+r}")
                a(f"v_cvt_pk_bf16_f32 v{d}, v{x}, v{x+1}\nv_cvt_pk_bf16_f32 v{d+2}, v{y}, v{y+1}")
                a(f"v_cvt_pk_bf16_f32 v{d+1}, v{x+2}, v{x+3}\nv_cvt_pk_bf16_f32 v{d+3}, v{y+2}, v{y+3}")
                a(f"s_nop 0\nv_permlane16_swap_b32 v{d}, v{d+2}\nv_permlane16_swap_b32 v{d+1}, v{d+3}")

    def signal(s):
        a = s.a; L = a.new("L_sig")
        a(f"""s_cmp_lg_u32 {sWV}, 0
        s_cbranch_scc1 {L}
        s_cmp_eq_u32 {sPEND}, 0
        s_cbranch_scc1 {L}
        s_lshl_b32 {sT0}, {sPEND}, {sFSH}
        v_mov_b32 v{vT}, {sT0}
        v_mov_b32 v{vT+1}, 0
        s_mov_b64 exec, 1
        buffer_atomic_or v{vT}, v{vT+1}, {srd(SDBG)}, {sFOFF} offen sc1
        s_mov_b64 exec, -1""")
        a.lab(L)
        a(f"s_mov_b32 {sPEND}, 0")

    def gemm_addr(s, tail):
        a = s.a
        a(f"""v_bfe_u32 v{vT}, v0, 3, 1
        s_mul_i32 {sT0}, {sWV}, 6
        v_add_u32 v{vT}, {sT0}, v{vT}
        v_lshlrev_b32 v{vT}, 10, v{vT}
        v_and_b32 v{vT+1}, 7, v0
        v_lshl_add_u32 v{vT}, v{vT+1}, 6, v{vT}
        v_lshrrev_b32 v{vT+1}, 2, v0
        v_sub_u32 v{vT+1}, 0, v{vT+1}
        v_and_b32 v{vT+1}, 3, v{vT+1}
        v_lshrrev_b32 v{vT+2}, 4, v0
        v_xor_b32 v{vT+1}, v{vT+1}, v{vT+2}
        v_lshl_add_u32 v{vT}, v{vT+1}, 4, v{vT}
        v_add_u32 v{vA0}, {sSLOT}, v{vT}""")
        sh = 10 if tail else 11
        a(f"""v_lshlrev_b32 v{vT}, {sh}, v{vT+2}
        v_bfe_u32 v{vT+1}, v0, 2, 2
        v_lshl_add_u32 v{vT}, v{vT+1}, 6, v{vT}
        v_and_b32 v{vT+1}, 1, v{vT+2}
        v_lshl_add_u32 v{vT}, v{vT+1}, 5, v{vT}
        v_and_b32 v{vT+1}, 3, v0
        v_lshl_add_u32 v{vT}, v{vT+1}, 3, v{vT}
        v_add_u32 v{vT}, 24576, v{vT}
        v_xor_b32 v{vT+1}, 32, v{vT}
        v_add_u32 v{vA1}, {sSLOT}, v{vT}
        v_add_u32 v{vA2}, {sSLOT}, v{vT+1}""")

    def gemm_loop(s, tail, hook):
        a = s.a; q = LQ(a)
        NT = 4 if tail else 8
        R = 8; LA = s.o.get("gla", 5) if not tail else 4
        vX = vS; vW = vS + 24
        wreg = [88, 92, 96, 100, 104, 108, 36, 40]
        NF = 2 * NT
        kso = 4096 if tail else 8192
        def rdW(f):
            ks, nt = (f % NF) // NT, f % NT
            r = wreg[f % R]; ad = vA1 if nt % 2 == 0 else vA2
            for sec in range(2):
                q.rd(f"ds_read_b64_tr_b16 {vr(r + 2*sec, 2)}, v{ad} offset:{ks*kso + (nt>>1)*512 + sec*256}", ("W", f % NF))
        def rdX(ks, mt):
            q.rd(f"ds_read_b128 {vr(vX + ks*12 + mt*4)}, v{vA0} offset:{mt*2048 + ks*512}", ("X", ks, mt))
        def grp(f, reads):
            ks, nt = f // NT, f % NT
            q.need(("W", f))
            for mt in range(3):
                q.need(("X", ks, mt))
                a(mfma(acc(nt, mt), wreg[f % R], vX + ks*12 + mt*4, acc(nt, mt)))
                if mt < len(reads): reads[mt]()
            for r in reads[3:]: r()
        a("s_barrier")
        s.stamp()
        for mt in range(3): rdX(0, mt)
        for f in range(LA): rdW(f)
        a(f"s_mov_b32 {sI}, 1")
        q0 = list(q.q)
        L = a.new("L_gl"); F = a.new("L_gf"); B = a.new("L_gb"); H = a.new("L_gh")
        a.lab(L)
        cut = NF - LA
        for f in range(cut):
            reads = [lambda f=f: rdW(f + LA)]
            if f < 3: reads.append(lambda f=f: rdX(1, f))
            if f == cut - 1: reads.append(lambda: s.adv_addr())
            grp(f, reads)
        qcut = list(q.q)
        a(f"s_cmp_eq_u32 {sI}, {sN}\ns_cbranch_scc1 {F}")
        if hook: a(f"s_cmp_eq_u32 {sI}, {hook[0]}\ns_cbranch_scc1 {H}")
        a("s_barrier")
        a.lab(B)
        s.adv_apply()
        a(f"s_add_u32 {sI}, {sI}, 1")
        for f in range(cut, NF):
            reads = []
            if f == cut: reads = [lambda: rdX(0, 0), lambda: rdX(0, 1), lambda: rdX(0, 2)]
            reads.append(lambda f=f: rdW(f + LA))
            grp(f, reads)
        assert q.q == q0, (q.q, q0)
        a(f"s_branch {L}")
        if hook:
            a.lab(H); hook[1](); a(f"s_branch {B}")
        a.lab(F)
        q.q = qcut
        for f in range(cut, NF): grp(f, [])
        a("s_nop 7")
        s.stamp()

    def att(s):
        a = s.a; q = LQ(a)
        def S(par, qt, kt=0): return vS + par * 24 + qt * 8 + kt * 4
        ring = lambda f: vRING + (f % 4) * 4
        def rd(f):
            f %= 16
            if f < 8:
                q.rd(f"ds_read_b128 {vr(ring(f))}, v{vA0} offset:{(f >> 2)*4096 + (f & 3)*512}", f)
            else:
                dt = f - 8; ad = vA1 if dt % 2 == 0 else vA2
                for sec in range(2):
                    q.rd(f"ds_read_b64_tr_b16 {vr(ring(f) + 2*sec, 2)}, v{ad} offset:{sec*4096 + (dt >> 1)*512}", f)
        a(f"""v_lshrrev_b32 v{vT+2}, 4, v0
        s_lshr_b32 {sT0}, {sWV}, 1
        s_lshl_b32 {sT0}, {sT0}, 13
        s_add_u32 {sT0}, {sT0}, {sSLOT}
        v_bfe_u32 v{vT}, v0, 3, 1
        v_lshrrev_b32 v{vT+1}, 1, v{vT+2}
        v_and_b32 v{vT+3}, 1, v{vT+2}
        v_lshl_or_b32 v{vM}, v{vT+3}, 1, v{vT+1}
        v_xor_b32 v{vM}, v{vM}, v{vT}
        v_lshlrev_b32 v{vM}, 4, v{vM}
        v_lshl_add_u32 v{vM}, v{vT}, 11, v{vM}
        v_and_b32 v{vT}, 7, v0
        v_lshl_add_u32 v{vM}, v{vT}, 6, v{vM}
        v_add_u32 v{vA0}, {sT0}, v{vM}
        v_lshlrev_b32 v{vM}, 11, v{vT+1}
        v_bfe_u32 v{vT}, v0, 2, 3
        v_lshl_add_u32 v{vM}, v{vT}, 6, v{vM}
        v_lshl_add_u32 v{vM}, v{vT+3}, 5, v{vM}
        v_and_b32 v{vT}, 3, v0
        v_lshl_add_u32 v{vM}, v{vT}, 3, v{vM}
        v_add_u32 v{vM}, 16384, v{vM}
        v_xor_b32 v{vT}, 32, v{vM}
        v_add_u32 v{vA1}, {sT0}, v{vM}
        v_add_u32 v{vA2}, {sT0}, v{vT}""")
        for r in range(4): a(f"v_mov_b32 v{vONES+r}, 0x3f803f80")
        for r in range(12): a(f"v_mov_b32 v{vL+r}, 0")
        for r in range(96): a(f"v_mov_b32 v{vACC+r}, 0")
        a("s_waitcnt vmcnt(0)" if True else "")
        a("s_barrier")
        s.stamp()
        def qk(par, f, c0, fill):
            kt, ks = f >> 2, f & 3
            q.need(f)
            for qt in range(3):
                d = S(par, qt, kt)
                a(mfma(d, ring(f), qreg(qt, ks), (c0(qt) if ks == 0 else d)))
                for x in fill[qt]: x()
        def rowmax(par, qt, dst, tmp):
            b = S(par, qt)
            a(f"v_max3_f32 v{dst}, v{b}, v{b+1}, v{b+2}\nv_max3_f32 v{dst}, v{dst}, v{b+3}, v{b+4}\nv_max3_f32 v{dst}, v{dst}, v{b+5}, v{b+6}\nv_max_f32 v{dst}, v{dst}, v{b+7}")
            a(f"v_mov_b32 v{tmp}, v{dst}\ns_nop 1\nv_permlane16_swap_b32 v{dst}, v{tmp}\ns_nop 1\nv_max_f32 v{dst}, v{dst}, v{tmp}")
            a(f"v_mov_b32 v{tmp}, v{dst}\ns_nop 1\nv_permlane32_swap_b32 v{dst}, v{tmp}\ns_nop 1\nv_max_f32 v{dst}, v{dst}, v{tmp}")
        for f in range(3): rd(f)
        for f in range(8):
            qk(0, f, lambda qt: "0", [[lambda f=f: rd(f + 3)] if f + 3 < 8 else [], [], []])
        s.adv_addr()
        a("s_barrier")
        s.adv_apply()
        for f in range(3): rd(f)
        a("s_nop 1")
        for qt in range(3):
            rowmax(0, qt, vM + qt, vM + 4)
            for r in range(8): a(f"v_sub_f32 v{S(0,qt)+r}, v{S(0,qt)+r}, v{vM+qt}")
            for r in range(4): a(f"v_sub_f32 v{vCI+qt*4+r}, 0, v{vM+qt}")
        a(f"s_mov_b32 {sI}, 0")
        q0 = list(q.q)
        def ex(par, i): return lambda: a(f"v_exp_f32 v{vS+par*24+i}, v{vS+par*24+i}")
        def cv(par, pr):
            qt, k = pr // 4, pr % 4; b = S(par, qt)
            return lambda: a(f"v_cvt_pk_bf16_f32 v{b+k}, v{b+2*k}, v{b+2*k+1}")
        def pv(par, f, fill):
            dt = f - 8
            q.need(f)
            for qt in range(3):
                a(mfma(acc(dt, qt), ring(f), S(par, qt), acc(dt, qt)))
                for x in fill[qt]: x()
        def ones(par, qt): a(mfma(vL + qt*4, vONES, S(par, qt), vL + qt*4))
        rare = []
        def step(par):
            nx = par ^ 1
            for f in range(8):
                fill = []
                for qt in range(3):
                    i = f * 3 + qt; x = []
                    if qt == 0: x.append(lambda f=f: rd(f + 3))
                    x.append(ex(par, i))
                    if i >= 2 and i % 2 == 0: x.append(cv(par, i // 2 - 1))
                    fill.append(x)
                qk(nx, f, lambda qt: vCI + qt*4, fill)
            ones(par, 0); cv(par, 11)(); ones(par, 1); a("s_nop 0"); ones(par, 2)
            regs = [S(nx, qt, kt) + r for kt in range(2) for qt in range(3) for r in range(4)]
            mx = []
            m0_, m1_ = vM, vM + 1
            mx.append(f"v_max3_f32 v{m0_}, v{regs[0]}, v{regs[1]}, v{regs[2]}")
            mx.append(f"v_max3_f32 v{m1_}, v{regs[3]}, v{regs[4]}, v{regs[5]}")
            rest = regs[6:]
            for i in range(0, len(rest), 2):
                m = m0_ if (i // 2) % 2 == 0 else m1_
                mx.append(f"v_max3_f32 v{m}, v{m}, v{rest[i]}, v{rest[i+1]}")
            mx.append(f"v_max_f32 v{m0_}, v{m0_}, v{m1_}")
            mx.append(f"v_cmp_lt_f32 vcc, {f32(THR)}, v{m0_}")
            mi = iter(mx)
            def nm():
                x = next(mi, None)
                if x: a(x)
            for f in range(8, 16):
                fill = [[], [], []]
                if f == 13:
                    a("s_barrier"); s.adv_apply()
                fill[0].append(lambda f=f: rd(f + 3))
                if f == 12: fill[1].append(lambda: s.adv_addr())
                if f >= 9:
                    fill[1].append(nm); fill[2].append(nm)
                pv(par, f, fill)
            assert next(mi, None) is None
            R_ = a.new("L_rare"); Bk = a.new("L_back")
            a(f"s_cbranch_vccnz {R_}")
            a.lab(Bk)
            rare.append((R_, Bk, nx))
        L = a.new("L_al"); F = a.new("L_af")
        a.lab(L)
        step(0)
        assert q.q == q0
        a(f"s_cmp_eq_u32 {sI}, 7\ns_cbranch_scc1 {F}")
        step(1)
        assert q.q == q0
        a(f"s_add_u32 {sI}, {sI}, 1\ns_branch {L}")
        for (R_, Bk, nx) in rare:
            a.lab(R_)
            a("s_nop 7")
            for qt in range(3):
                rowmax(nx, qt, vM + qt, vM + 4)
                a(f"v_max_f32 v{vM+qt}, 0, v{vM+qt}\nv_sub_f32 v{vM+5}, 0, v{vM+qt}\nv_exp_f32 v{vM+5}, v{vM+5}")
                for r in range(8): a(f"v_sub_f32 v{S(nx,qt)+r}, v{S(nx,qt)+r}, v{vM+qt}")
                for r in range(4): a(f"v_sub_f32 v{vCI+qt*4+r}, v{vCI+qt*4+r}, v{vM+qt}")
                for r in range(4): a(f"v_mul_f32 v{vL+qt*4+r}, v{vL+qt*4+r}, v{vM+5}")
                for dt in range(8):
                    for r in range(4): a(f"v_mul_f32 v{acc(dt,qt)+r}, v{acc(dt,qt)+r}, v{vM+5}")
            a(f"s_nop 1\ns_branch {Bk}")
        a.lab(F)
        for f in range(8, 11): rd(f)
        for i in range(24):
            ex(1, i)()
            if i >= 2 and i % 2 == 0: cv(1, i // 2 - 1)()
        ones(1, 0); cv(1, 11)(); ones(1, 1); a("s_nop 0"); ones(1, 2)
        for f in range(8, 16):
            pv(1, f, [[lambda f=f: rd(f + 3)] if f + 3 < 16 else [], [], []])
        s.next_slot(sSLOT)
        s.stamp()
        for qt in range(3): a(f"v_rcp_f32 v{vM+qt}, v{vL+qt*4}")
        a(f"""v_bfe_u32 v{vT}, v0, 3, 1
        s_mul_i32 {sT0}, {sWV}, 6
        v_add_u32 v{vT}, {sT0}, v{vT}
        v_lshlrev_b32 v{vT}, 10, v{vT}
        v_and_b32 v{vT+1}, 7, v0
        v_lshl_add_u32 v{vT}, v{vT+1}, 6, v{vT}
        v_lshrrev_b32 v{vT+1}, 2, v0
        v_sub_u32 v{vT+1}, 0, v{vT+1}
        v_and_b32 v{vT+1}, 3, v{vT+1}
        v_lshrrev_b32 v{vT+2}, 5, v0
        v_bfe_u32 v{vT+3}, v0, 4, 1
        v_lshl_or_b32 v{vT+2}, v{vT+3}, 1, v{vT+2}
        v_xor_b32 v{vT+1}, v{vT+1}, v{vT+2}
        v_lshl_add_u32 v{vT}, v{vT+1}, 4, v{vT}
        v_add_u32 v{vT+1}, 4096, v{vT}""")
        s.head_of_sel(sT0)
        a(f"""s_lshl_b32 {sT1}, {sPM}, 5
        s_add_u32 {sT0}, {sT0}, {sT1}
        s_mul_i32 {sT0}, {sT0}, 49152
        s_add_u32 {sT0}, {sT0}, {WS_O}
        s_add_u32 {sT1}, {sT0}, 24576""")
        s.pack_acc(8, lambda mt: f"v{vM+mt}", qreg)
        for mt in range(3):
            for ks in range(4):
                a(f"buffer_store_dwordx4 {vr(qreg(mt, ks))}, v{vT + (1 if mt == 2 else 0)}, {srd(SWS)}, {sT0 if ks < 2 else sT1} offen offset:{(mt & 1)*2048 + (ks & 1)*512} sc1")
        a(f"s_lshl_b32 {sT0}, 1, {sSEL}\ns_or_b32 {sPEND}, {sPEND}, {sT0}")

    def wsq_addr(s):
        s.a(f"""s_mul_i32 {sT0}, {sWG}, 49152
        s_mul_i32 {sT1}, {sWV}, 12288
        s_add_u32 {sT0}, {sT0}, {sT1}
        s_add_u32 {sT0}, {sT0}, {WS_Q}
        v_lshlrev_b32 v{vT}, 4, v0""")

    def compute(s, kname, has_main, tailcfg):
        a = s.a
        CN = f"{kname}_cnext"; CA = f"{kname}_catt"; CT = f"{kname}_ctail"; CE = f"{kname}_cend"
        a(f"""s_lshl_b32 {sFOFF}, {sPM}, 1
        s_add_u32 {sFOFF}, {sFOFF}, {sG}
        s_lshl_b32 {sFOFF}, {sFOFF}, 2
        s_add_u32 {sFOFF}, {sFOFF}, 128
        s_lshl_b32 {sFSH}, {sHS}, 2
        s_mov_b32 {sPEND}, 0""")
        a.lab(CN)
        s.decode()
        if tailcfg is not None: a(f"s_cmp_eq_u32 {sCODE}, 6\ns_cbranch_scc1 {CT}")
        if has_main:
            a(f"s_cmp_eq_u32 {sCODE}, 0\ns_cbranch_scc1 {CE}")
            a(f"s_cmp_eq_u32 {sCODE}, 3\ns_cbranch_scc1 {CA}")
            G = a.new("L_cg")
            a(f"s_cmp_lg_u32 {sCODE}, 4\ns_cbranch_scc1 {G}")
            s.wsq_addr()
            a("s_waitcnt vmcnt(0)")
            for i in range(12):
                if i % 4 == 0 and i: a(f"s_add_u32 {sT0}, {sT0}, 4096")
                a(f"buffer_load_dwordx4 {vr(vQ + 4*i)}, v{vT}, {srd(SWS)}, {sT0} offen offset:{(i % 4)*1024} sc1")
            a(f"s_branch {CA}")
            a.lab(G)
            a(f"s_cmp_eq_u32 {sCODE}, 5\ns_cselect_b32 {sN}, 24, 16")
            s.gemm_addr(False)
            for r in range(96): a(f"v_mov_b32 v{vACC+r}, 0")
            def hk():
                a("s_waitcnt vmcnt(0)\ns_barrier"); s.signal()
            s.gemm_loop(False, (4, hk) if s.mode == "fused" else None)
            if s.mode == "fused":
                O5 = a.new("L_o5")
                a(f"s_cmp_eq_u32 {sCODE}, 5\ns_cbranch_scc1 {O5}")
            a(f"s_mov_b32 {sT2}, {f32(QSCALE)}")
            s.pack_acc(8, lambda mt: sT2, qreg)
            a(f"s_cmp_eq_u32 {sCODE}, 1\ns_cbranch_scc1 {CN}")
            s.wsq_addr()
            for i in range(12):
                if i % 4 == 0 and i: a(f"s_add_u32 {sT0}, {sT0}, 4096")
                a(f"buffer_store_dwordx4 {vr(vQ + 4*i)}, v{vT}, {srd(SWS)}, {sT0} offen offset:{(i % 4)*1024}")
            a(f"s_branch {CN}")
            if s.mode == "fused":
                a.lab(O5)
                a(f"""s_mul_i32 {sT0}, {sWG}, 98304
                s_mul_i32 {sT1}, {sWV}, 12288
                s_add_u32 {sT0}, {sT0}, {sT1}
                s_add_u32 {sT0}, {sT0}, {WS_P}
                v_lshlrev_b32 v{vT}, 4, v0""")
                for i in range(24):
                    if i == 12: a(f"s_add_u32 {sT0}, {sT0}, {49152 - 8192}")
                    elif i % 4 == 0 and i: a(f"s_add_u32 {sT0}, {sT0}, 4096")
                    a(f"buffer_store_dwordx4 {vr(vACC + 4*i)}, v{vT}, {srd(SWS)}, {sT0} offen offset:{(i % 4)*1024} sc1")
                a(f"s_or_b32 {sPEND}, {sPEND}, 4\ns_nop 0")
                a(f"s_branch {CN}")
            a.lab(CA)
            s.att()
            a(f"s_branch {CN}")
        if tailcfg is not None:
            a.lab(CT)
            if tailcfg["sync"]:
                a("s_waitcnt vmcnt(0)\ns_barrier"); s.signal()
                s.stamp()
            a(f"s_mov_b32 {sN}, {tailcfg['n']}")
            s.gemm_addr(True)
            for r in range(48): a(f"v_mov_b32 v{vACC+r}, 0")
            vP = vACC + 48
            def hk():
                a("s_barrier")
                a(f"s_xor_b32 {sFOFF}, {sFOFF}, 4\ns_lshl_b32 {sPEND}, 4, {sFSH}\nv_mov_b32 v{vT+1}, 0")
                s.poll(sFOFF, sPEND, vT, vT + 1)
                a(f"""s_and_b32 {sT0}, {sWG}, 0xf7
                s_mul_i32 {sT0}, {sT0}, 98304
                s_mul_i32 {sT1}, {sWV}, 12288
                s_add_u32 {sT0}, {sT0}, {sT1}
                s_mul_i32 {sT1}, {sG}, 49152
                s_add_u32 {sT0}, {sT0}, {sT1}
                s_add_u32 {sT0}, {sT0}, {WS_P}
                v_lshlrev_b32 v{vT}, 4, v0""")
                for i in range(24):
                    if i == 12: a(f"s_add_u32 {sT0}, {sT0}, {8*98304 - 8192}")
                    elif i % 4 == 0 and i: a(f"s_add_u32 {sT0}, {sT0}, 4096")
                    a(f"buffer_load_dwordx4 {vr(vP + 4*i)}, v{vT}, {srd(SWS)}, {sT0} offen offset:{(i % 4)*1024} sc1")
            s.gemm_loop(True, (tailcfg["n"] - 4, hk) if tailcfg["sync"] else None)
            if tailcfg["sync"]:
                a("s_waitcnt vmcnt(0)")
                for r in range(48): a(f"v_add_f32 v{vACC+r}, v{vACC+r}, v{vP+r}")
                for r in range(48): a(f"v_add_f32 v{vACC+r}, v{vACC+r}, v{vP+48+r}")
            dst = lambda mt, pr: vS + (mt * 2 + pr) * 4
            s.pack_acc(4, None, dst)
            a(f"""v_and_b32 v{vT}, 15, v0
            v_lshlrev_b32 v{vT}, 12, v{vT}
            v_lshrrev_b32 v{vT+2}, 5, v0
            v_bfe_u32 v{vT+3}, v0, 4, 1
            v_lshl_or_b32 v{vT+2}, v{vT+3}, 1, v{vT+2}
            v_lshl_add_u32 v{vT}, v{vT+2}, 4, v{vT}
            s_mul_i32 {sT0}, {sMB}, 192
            s_mul_i32 {sT1}, {sWV}, 48
            s_add_u32 {sT0}, {sT0}, {sT1}
            s_lshl_b32 {sT0}, {sT0}, 12
            s_lshl_b32 {sT1}, {sP}, 11
            s_add_u32 {sT0}, {sT0}, {sT1}
            s_lshl_b32 {sT1}, {sHS}, 8
            s_add_u32 {sT0}, {sT0}, {sT1}
            s_lshl_b32 {sT1}, {sG}, 7
            s_add_u32 {sT0}, {sT0}, {sT1}""")
            for mt in range(3):
                if mt: a(f"s_add_u32 {sT0}, {sT0}, 65536")
                for pr in range(2):
                    a(f"buffer_store_dwordx4 {vr(dst(mt, pr))}, v{vT}, {srd(SOUT)}, {sT0} offen offset:{pr*64}")
        a.lab(CE)
        if "spinto" in s.o:
            L = a.new("L_spin"); a.lab(L)
            a(f"s_memrealtime s[100:101]\ns_waitcnt lgkmcnt(0)\ns_sub_u32 s100, s100, s98\ns_cmp_lt_u32 s100, {s.o['spinto']}\ns_cbranch_scc1 {L}")
        if s.stamps: a("s_waitcnt vmcnt(0)")
        s.stamp()
        s.stamp_dump()
        a.lab(f"{kname}_end")
        a("s_endpgm")

    def kernel(s, kname, progs, has_main, tailcfg):
        s.setup(kname, progs)
        s.compute(kname, has_main, tailcfg)
        s.loader(kname, has_main, tailcfg)

    def desc(s, kname):
        return f""".amdhsa_kernel {kname}
  .amdhsa_next_free_vgpr 256
  .amdhsa_next_free_sgpr 102
  .amdhsa_accum_offset 256
  .amdhsa_group_segment_fixed_size 0
  .amdhsa_kernarg_size 104
  .amdhsa_user_sgpr_count 2
  .amdhsa_user_sgpr_kernarg_segment_ptr 1
  .amdhsa_system_sgpr_workgroup_id_x 1
.end_amdhsa_kernel"""

    def build(s):
        def prog(l):
            v = 0
            for i, c in enumerate(l): v |= c << (4 * i)
            return v
        hdr = []
        K = NAME + "_kernel"
        if s.mode == "fused":
            hdr.append("; @launch grid=(256,1,1) block=(512,1,1) lds=163840")
            s.kernel(K, (prog([1, 3, 9, 11, 5, 6]), prog([10, 1, 3, 5, 12, 6])), True, dict(sync=True, kst=48, n=16))
            ks = [K]
        else:
            K2 = "oproj_kernel"
            hdr.append(f"; @launch kernel={K} grid=(256,1,1) block=(512,1,1) lds=163840")
            hdr.append(f"; @launch kernel={K2} grid=(256,1,1) block=(512,1,1) lds=163840")
            s.kernel(K, (prog([1, 3, 9, 11]), prog([10, 1, 3, 12])), True, None)
            st = s.stamps; s.stamps = False
            s.kernel(K2, (6, 6), False, dict(sync=False, kst=0, n=64))
            s.stamps = st
            ks = [K, K2]
        if s.o.get("nocomp"):
            s.a.l = [x for x in s.a.l if not re.match(r"\s+(v_mfma|ds_read|v_exp|v_cvt_pk|v_max3|s_cbranch_vccnz)", x)]
        if s.o.get("nostore"):
            s.a.l = [x for x in s.a.l if not re.match(r"\s+buffer_store_dwordx4", x)]
        if s.o.get("nomfma"):
            s.a.l = [x for x in s.a.l if not re.match(r"\s+(v_mfma|v_exp|v_cvt_pk|v_max3|s_cbranch_vccnz)", x)]
        if s.o.get("nolds"):
            s.a.l = [x for x in s.a.l if not re.match(r"\s+(ds_read|s_cbranch_vccnz)", x)]
        if s.o.get("noload"):
            s.a.l = [x for x in s.a.l if not (re.match(r"\s+buffer_load.* lds", x) or "s_cbranch_vccnz" in x)]
        out = hdr + ['.amdgcn_target "amdgcn-amd-amdhsa--gfx950"', ".text"] + s.a.l
        out += ['.section .rodata,"a"']
        for k in ks: out += [".p2align 6", s.desc(k)]
        return "\n".join(out) + "\n"

if __name__ == "__main__":
    import argparse, json
    ap = argparse.ArgumentParser()
    ap.add_argument("-o", default="k.s"); ap.add_argument("--mode", default="fused"); ap.add_argument("--stamps", action="store_true")
    ap.add_argument("--opts", default="{}")
    A = ap.parse_args()
    open(A.o, "w").write(Gen(A.mode, A.stamps, json.loads(A.opts)).build())
```

```python
import sys, re, math, struct
NAME = "concat_heads__mha_block_cached__gqa_block_cached__near_ridge"

SLOT = 40960
WS_F = 0x0
WS_O = 0x2000000
WS_P = 0x4000000
WS_T = 0x8000000
WS_SIZE = 308281344
THR = 8.0
QSCALE = math.log2(math.e) / math.sqrt(128.0)
def f32(x): return "0x%08x" % struct.unpack("<I", struct.pack("<f", x))[0]

class Asm:
    def __init__(s): s.l = []; s.uid = 0
    def __call__(s, t):
        for x in t.split("\n"):
            x = x.strip()
            if x: s.l.append("    " + x)
    def lab(s, n): s.l.append(n + ":")
    def c(s, t): s.l.append("    ; " + t)
    def new(s, p): s.uid += 1; return f"{p}_{s.uid}"

class LQ:
    def __init__(s, a): s.a = a; s.q = []
    def rd(s, ins, tag):
        s.a(ins); s.q.append(tag); assert len(s.q) <= 15, "lgkm overflow"
    def need(s, *tags):
        idx = [i for i, t in enumerate(s.q) if t in tags]
        if not idx: return
        n = len(s.q) - 1 - idx[-1]
        s.a(f"s_waitcnt lgkmcnt({n})"); s.q = s.q[idx[-1] + 1:]

def vr(b, n=4): return f"v[{b}:{b+n-1}]"
def mfma(d, a_, b_, c): return f"v_mfma_f32_16x16x32_bf16 {vr(d)}, {vr(a_)}, {vr(b_)}, {c if isinstance(c, str) else vr(c)}"

sWG, sW, sP, sG, sMB, sHS, sROT, sPM, sTEAM, sCHK = "s2", "s3", "s4", "s5", "s6", "s7", "s8", "s9", "s10", "s11"
SX, SWQ, SWO, SK, SV, SWS, SOUT, SDBG = 28, 32, 36, 40, 44, 48, 52, 56
def srd(b): return f"s[{b}:{b+3}]"
sT0, sT1, sT2, sT3 = "s60", "s61", "s62", "s63"
sLS, sLI, sBA, sBB, sROFF, sKST, sA, sB0, sB1, sM0, sKB, sTK, sTV, sW1K = \
    "s64", "s65", "s66", "s67", "s68", "s69", "s70", "s71", "s72", "s73", "s74", "s75", "s76", "s77"
sCS, sCI, sCN, sSTOP, sDL, sSIG, sSEL = "s12", "s13", "s14", "s15", "s16", "s17", "s18"
sFLG, sNEED, sBIT, sCNT = "s19", "s20", "s21", "s22"
LR1, LR2 = "s[24:25]", "s[26:27]"
sSTAMP = 80
sSTR, sXOR = "s78", "s79"

vA0, vA1, vA2 = 1, 2, 3
vT = 4
vONES = 8
vCI = 12
vL = 24
vRING = 36
vM = 52
vLX, vLWQ, vLO, vLWO, vLK, vLV = 58, 59, 60, 61, 62, 63
vS = 64
vACC = 112
vQ = 208
def acc(nt, mt): return vACC + (nt * 3 + mt) * 4
def qreg(mt, ks): return vQ + (mt * 4 + ks) * 4

class Gen:
    def __init__(s, stamps=False, opts=None):
        s.stamps = stamps; s.a = Asm(); s.o = opts or {}

    def stamp(s):
        if s.stamps: s.a("s_call_b64 s[96:97], F_STAMP")
    def trace(s):
        if s.o.get("trace"): s.a("s_call_b64 s[96:97], F_TRACE")
    def stamp_funcs(s):
        a = s.a
        if s.o.get("trace"):
            a.lab("F_TRACE")
            a(f"""s_cmp_lg_u32 {sW}, 1
            s_cbranch_scc1 L_trx
            s_memrealtime s[100:101]
            s_waitcnt lgkmcnt(0)
            v_mov_b32 v{vT+2}, s100
            v_mov_b32 v{vT+3}, 0
            buffer_store_dword v{vT+2}, v{vT+3}, {srd(SWS)}, s98 offen
            s_add_u32 s98, s98, 4""")
            a.lab("L_trx")
            a("s_setpc_b64 s[96:97]")
        if not s.stamps: return
        a.lab("F_STAMP")
        a(("s_memtime" if s.o.get("cyc") else "s_memrealtime") + " s[100:101]\ns_waitcnt lgkmcnt(0)")
        for i in range(sSTAMP + 15, sSTAMP, -1): a(f"s_mov_b32 s{i}, s{i-1}")
        a(f"s_mov_b32 s{sSTAMP}, s100\ns_setpc_b64 s[96:97]")
    def finish(s):
        a = s.a
        a.lab("L_finish")
        if "spinto" in s.o:
            L = a.new("L_spin"); a.lab(L)
            a(f"s_memrealtime s[100:101]\ns_waitcnt lgkmcnt(0)\ns_sub_u32 s100, s100, s98\ns_cmp_lt_u32 s100, {s.o['spinto']}\ns_cbranch_scc1 {L}")
        if s.stamps:
            a("s_waitcnt vmcnt(0)"); s.stamp()
            a(f"s_lshl_b32 {sT0}, {sWG}, 1\ns_add_u32 {sT0}, {sT0}, {sTEAM}\ns_lshl_b32 {sT0}, {sT0}, 2\ns_add_u32 {sT0}, {sT0}, {sW}\ns_lshl_b32 {sT0}, {sT0}, 6\ns_add_u32 {sT0}, {sT0}, {WS_T}")
            a(f"v_mov_b32 v{vT}, 0")
            for i in range(16):
                a(f"v_mov_b32 v{vT+1}, s{sSTAMP+i}\nbuffer_store_dword v{vT+1}, v{vT}, {srd(SWS)}, {sT0} offen offset:{4*i}\ns_nop 1")
            a("s_waitcnt vmcnt(0)")
        a.lab("L_end")
        a("s_endpgm")

    def setup(s, K):
        a = s.a
        a.l.append(f".globl {K}\n.p2align 8\n.type {K},@function\n{K}:")
        a(f"""s_cmp_ge_u32 {sWG}, 256
        s_cbranch_scc1 L_end
        s_and_b32 {sT2}, {sWG}, 7
        s_lshr_b32 {sP}, {sT2}, 2
        s_mul_i32 {sT0}, {sP}, 40
        s_add_u32 s60, s0, {sT0}
        s_addc_u32 s61, s1, 0
        s_load_dwordx2 s[{SX}:{SX+1}], s[60:61], 0
        s_load_dwordx2 s[{SWQ}:{SWQ+1}], s[60:61], 24
        s_load_dwordx2 s[{SK}:{SK+1}], s[60:61], 8
        s_load_dwordx2 s[{SV}:{SV+1}], s[60:61], 16
        s_load_dwordx2 s[{SWO}:{SWO+1}], s[60:61], 32
        s_load_dwordx2 s[{SOUT}:{SOUT+1}], s[0:1], 80
        s_load_dwordx2 s[{SDBG}:{SDBG+1}], s[0:1], 88
        s_load_dwordx2 s[{SWS}:{SWS+1}], s[0:1], 96""")
        if "spinto" in s.o: a("s_memrealtime s[98:99]")
        a(f"""v_lshrrev_b32 v1, 6, v0
        v_and_b32 v0, 63, v0
        v_readfirstlane_b32 {sW}, v1
        s_bfe_u32 {sG}, {sWG}, 0x10003
        s_lshr_b32 {sCI}, {sWG}, 4
        s_and_b32 {sCN}, {sCI}, 3
        s_lshr_b32 {sCI}, {sCI}, 2
        s_add_u32 {sROT}, {sCN}, {sCI}
        s_and_b32 {sROT}, {sROT}, 3
        s_and_b32 {sMB}, {sT2}, 1
        s_lshl_b32 {sMB}, {sMB}, 2
        s_add_u32 {sMB}, {sMB}, {sCN}
        s_bfe_u32 {sHS}, {sT2}, 0x10001
        s_lshl_b32 {sHS}, {sHS}, 2
        s_add_u32 {sHS}, {sHS}, {sCI}
        s_lshl_b32 {sPM}, {sP}, 3
        s_add_u32 {sPM}, {sPM}, {sMB}
        s_lshr_b32 {sTEAM}, {sW}, 2
        s_and_b32 {sW}, {sW}, 3
        s_lshl_b32 {sW1K}, {sW}, 10
        s_lshl_b32 {sFLG}, {sPM}, 8
        s_add_u32 {sFLG}, {sFLG}, {WS_F}
        s_bfe_u32 {sCHK}, {sWG}, 0x30004
        s_add_u32 {sCHK}, {sCHK}, 4""")
        if s.o.get("rnd", 1):
            a(f"""s_mul_i32 {sT3}, {sWG}, 0x9E3779B1
            s_lshr_b32 {sSTR}, {sT3}, 29
            s_lshl_b32 {sSTR}, {sSTR}, 14
            s_or_b32 {sSTR}, {sSTR}, 8192
            s_bfe_u32 {sXOR}, {sT3}, 0x40018
            s_lshl_b32 {sXOR}, {sXOR}, 13
            s_or_b32 {sXOR}, {sXOR}, 0x400000""")
        else:
            a(f"s_mov_b32 {sSTR}, 8192\ns_mov_b32 {sXOR}, {hex(0x400000 + s.o.get('xo', 0)*8192)}")
        for (b, size) in [(SX, 3145728), (SWQ, 8388608), (SWO, 8388608), (SK, 67108864), (SV, 67108864),
                          (SWS, WS_SIZE), (SOUT, 6291456), (SDBG, 256)]:
            a(f"s_mov_b32 s{b+2}, {size}\ns_mov_b32 s{b+3}, 0x20000")
        a(f"""v_lshrrev_b32 v1, 5, v0
        v_lshlrev_b32 v1, 6, v1
        v_bfe_u32 v2, v0, 2, 3
        v_and_b32 v3, 3, v0
        s_lshl_b32 {sT2}, {sW}, 3
        v_add_u32 v4, {sT2}, v2
        v_lshrrev_b32 v5, 2, v4
        v_sub_u32 v5, 0, v5
        v_and_b32 v5, 3, v5
        v_xor_b32 v5, v5, v3
        v_lshl_add_u32 v5, v5, 4, v1
        v_lshl_add_u32 v{vLX}, v4, 11, v5
        s_and_b32 {sT2}, {sW}, 1
        s_lshl_b32 {sT3}, {sT2}, 1
        v_xor_b32 v5, {sT3}, v3
        v_lshl_add_u32 v5, v5, 4, v1
        v_lshl_add_u32 v{vLWQ}, v4, 13, v5
        v_lshl_add_u32 v{vLWO}, v4, 11, v5
        v_lshlrev_b32 v5, 4, v0
        v_add_u32 v{vLO}, {sW1K}, v5
        v_xor_b32 v5, {sT2}, v3
        v_lshl_add_u32 v5, v5, 4, v1
        v_lshl_add_u32 v{vLK}, v4, 8, v5
        v_lshrrev_b32 v5, 2, v2
        v_lshlrev_b32 v5, 1, v5
        v_xor_b32 v5, v5, v3
        v_lshl_add_u32 v5, v5, 4, v1
        v_lshl_add_u32 v{vLV}, v4, 8, v5""")
        if s.stamps:
            for i in range(16): a(f"s_mov_b32 s{sSTAMP+i}, 0")
        if s.o.get("trace"):
            a(f"s_lshl_b32 s98, {sWG}, 1\ns_add_u32 s98, s98, {sTEAM}\ns_lshl_b32 s98, s98, 9\ns_add_u32 s98, s98, {WS_T + 0x100000}")
        a("s_waitcnt lgkmcnt(0)")
        s.stamp()
        a(f"""s_cmp_eq_u32 {sG}, 0
        s_cbranch_scc0 L_g2
        s_cmp_eq_u32 {sTEAM}, 0
        s_cbranch_scc1 L_g1t0
        s_branch L_g1t1""")
        a.lab("L_g2")
        a(f"s_cmp_eq_u32 {sTEAM}, 0\ns_cbranch_scc1 L_g2t0\ns_branch L_g2t1")

    def call(s, f, lr=LR1): s.a(f"s_call_b64 {lr}, {f}")
    def W(s, n): s.a(f"s_waitcnt vmcnt({n})")
    def B(s): s.a("s_barrier")
    def head(s, dst, sel):
        s.a(f"s_lshl_b32 {dst}, {sG}, 3\ns_add_u32 {dst}, {dst}, {sHS}")
        if sel: s.a(f"s_add_u32 {dst}, {dst}, 16")
    def setQ(s, sel, start):
        s.head(sT0, sel)
        s.a(f"""s_lshl_b32 {sBB}, {sT0}, 8
        s_mul_i32 {sBA}, {sMB}, {192*2048}
        s_lshl_b32 {sROFF}, {sROT}, 1
        s_add_u32 {sROFF}, {sROFF}, {sG}
        s_lshl_b32 {sROFF}, {sROFF}, 1
        s_mov_b32 {sLI}, {start}
        s_mov_b32 {sLS}, {start*SLOT}""")
        if s.o.get("noqrot"): s.a(f"s_mov_b32 {sROFF}, 0")
    def setO(s, kst, start):
        s.a(f"""s_mul_i32 {sBA}, {sPM}, {32*49152}
        s_add_u32 {sBA}, {sBA}, {WS_O}
        s_lshl_b32 {sBB}, {sHS}, 1
        s_add_u32 {sBB}, {sBB}, {sG}
        s_lshl_b32 {sBB}, {sBB}, 7
        s_lshl_b32 {sROFF}, {sROT}, 1
        s_mov_b32 {sKST}, {kst}
        s_mov_b32 {sLI}, {start}
        s_mov_b32 {sLS}, {start*SLOT}""")
    def setA(s, sel, start):
        s.head(sT0, sel)
        s.a(f"""s_lshl_b32 {sT1}, {sMB}, 6
        s_add_u32 {sT0}, {sT0}, {sT1}
        s_lshl_b32 {sKB}, {sT0}, 17
        s_lshr_b32 {sTK}, {sWG}, 4
        s_lshl_b32 {sTK}, {sTK}, 13
        s_mov_b32 {sTV}, {sTK}
        s_mov_b32 {sLI}, {start}
        s_mov_b32 {sLS}, {start*SLOT}""")
        if start:
            s.a(f"""s_mul_i32 {sT0}, {sSTR}, {start+1}
            s_add_u32 {sTK}, {sTK}, {sT0}
            s_and_b32 {sTK}, {sTK}, 0x1ffff
            s_mul_i32 {sT0}, {sSTR}, {start-1}
            s_add_u32 {sTV}, {sTV}, {sT0}
            s_and_b32 {sTV}, {sTV}, 0x1ffff""")
    def iss_end(s):
        s.a(f"""s_add_u32 {sLS}, {sLS}, {SLOT}
        s_cmp_eq_u32 {sLS}, {4*SLOT}
        s_cselect_b32 {sLS}, 0, {sLS}
        s_add_u32 {sLI}, {sLI}, 1
        s_setpc_b64 {LR1}""")
    def loader_funcs(s):
        a = s.a
        def gemm_iss(name, kind):
            a.lab(name)
            s.trace()
            if kind == "Q":
                a(f"""s_add_u32 {sT0}, {sLI}, {sROFF}
                s_and_b32 {sT0}, {sT0}, 15
                s_lshl_b32 {sA}, {sT0}, 7
                s_add_u32 {sA}, {sA}, {sBA}
                s_lshl_b32 {sB0}, {sT0}, 19
                s_add_u32 {sB0}, {sB0}, {sBB}""")
                ja, jb, ra, rb, va, vb, fa, fb = 65536, 32*8192, SX, SWQ, vLX, vLWQ, s.o.get("fx", ""), s.o.get("fwq", "")
            else:
                a(f"""s_add_u32 {sT0}, {sLI}, {sROFF}
                s_and_b32 {sT0}, {sT0}, 7
                s_and_b32 {sT1}, {sLI}, 0x78
                s_add_u32 {sT0}, {sT0}, {sT1}
                s_add_u32 {sT0}, {sT0}, {sKST}
                s_mul_i32 {sA}, {sT0}, 24576
                s_add_u32 {sA}, {sA}, {sBA}
                s_lshl_b32 {sB0}, {sT0}, 17
                s_add_u32 {sB0}, {sB0}, {sBB}""")
                ja, jb, ra, rb, va, vb, fa, fb = 4096, 32*2048, SWS, SWO, vLO, vLWO, "sc1", s.o.get("fwo", "")
            a(f"s_add_u32 {sM0}, {sLS}, {sW1K}")
            for j in range(6):
                a(f"s_add_u32 m0, {sM0}, {j*4096}")
                a(f"s_add_u32 {sA}, {sA}, {ja}" if j else f"s_xor_b32 {sB1}, {sB0}, 128")
                a(f"buffer_load_dwordx4 v{va}, {srd(ra)}, {sA} offen {fa} lds")
            if kind == "T":
                for oo in range(2):
                    a(f"s_add_u32 m0, {sM0}, {24576 + oo*4096}")
                    a(f"s_add_u32 {sB0}, {sB0}, {jb}" if oo else "s_nop 0")
                    a(f"buffer_load_dwordx4 v{vb}, {srd(rb)}, {sB0} offen {fb} lds")
            else:
                a(f"s_add_u32 {sM0}, {sM0}, {sW1K}")
                for oo in range(2):
                    for hf in range(2):
                        r = sB1 if hf else sB0
                        a(f"s_add_u32 m0, {sM0}, {24576 + oo*8192 + hf*1024}")
                        a(f"s_add_u32 {r}, {r}, {jb}" if oo else "s_nop 0")
                        a(f"buffer_load_dwordx4 v{vb}, {srd(rb)}, {r} offen {fb} lds")
            s.iss_end()
        gemm_iss("F_IQ", "Q"); gemm_iss("F_IO", "O"); gemm_iss("F_IT", "T")
        fk = s.o.get("fk", "nt")
        def half(kind, pos):
            sr, vo, t = (SK, vLK, sTK) if kind == "K" else (SV, vLV, sTV)
            a(f"s_add_u32 {sA}, {sKB}, {t}\ns_xor_b32 {sB0}, {sA}, {sXOR}")
            fill = [f"s_add_u32 {t}, {t}, {sSTR}", f"s_and_b32 {t}, {t}, 0x1ffff", "s_nop 0", "s_nop 0"]
            for it in range(2):
                for hf in range(2):
                    a(f"s_add_u32 m0, {sM0}, {pos*16384 + it*8192 + hf*(1024-128)}\n{fill[it*2+hf]}")
                    a(f"buffer_load_dwordx4 v{vo}, {srd(sr)}, {sA if it == 0 else sB0} offen offset:{hf*128} {fk} lds")
        for name, k0, k1 in (("F_IA0", "K", "K"), ("F_IAM", "V", "K"), ("F_IAL", "V", "V")):
            a.lab(name)
            s.trace()
            a(f"s_add_u32 {sM0}, {sLS}, {sW1K}\ns_add_u32 {sM0}, {sM0}, {sW1K}")
            half(k0, 0); half(k1, 1)
            s.iss_end()
        a.lab("F_FPRE")
        a(f"""s_cmp_lg_u32 {sW}, 0
        s_cbranch_scc1 F_RET1
        v_and_b32 v{vT+1}, 15, v0
        v_lshlrev_b32 v{vT+1}, 2, v{vT+1}
        buffer_load_dword v{vT}, v{vT+1}, {srd(SWS)}, {sFLG} offen sc1""")
        a.lab("F_RET1")
        a(f"s_setpc_b64 {LR1}")
        a.lab("F_FCHK")
        a(f"s_cmp_lg_u32 {sW}, 0\ns_cbranch_scc1 F_RET1\ns_mov_b32 {sCNT}, 0x40000")
        a.lab("L_fchk")
        a(f"""v_and_b32 v{vT+2}, {sBIT}, v{vT}
        v_cmp_ne_u32 vcc, 0, v{vT+2}
        s_nop 1
        s_and_b32 {sT0}, vcc_lo, {sNEED}
        s_cmp_eq_u32 {sT0}, {sNEED}
        s_cbranch_scc1 F_RET1
        s_sub_u32 {sCNT}, {sCNT}, 1
        s_cmp_eq_u32 {sCNT}, 0
        s_cbranch_scc1 F_RET1
        s_sleep {s.o.get('slp', 2)}
        buffer_load_dword v{vT}, v{vT+1}, {srd(SWS)}, {sFLG} offen sc1
        s_waitcnt vmcnt(0)
        s_branch L_fchk""")
        a.lab("F_SIG")
        a(f"""s_cmp_lg_u32 {sW}, 0
        s_cbranch_scc1 F_RET1
        s_lshl_b32 {sT0}, {sG}, 3
        s_add_u32 {sT0}, {sT0}, {sHS}
        s_lshl_b32 {sT0}, {sT0}, 2
        v_mov_b32 v{vT+3}, {sT0}
        v_mov_b32 v{vT+2}, {sSIG}
        s_mov_b64 exec, 1
        buffer_store_dword v{vT+2}, v{vT+3}, {srd(SWS)}, {sFLG} offen sc1
        s_mov_b64 exec, -1
        s_setpc_b64 {LR1}""")
    def need_block(s, b):
        r = b >> 1
        s.a(f"s_mov_b32 {sBIT}, {1 << (r >> 1)}\ns_mov_b32 {sNEED}, {hex(0xF << ((r & 1)*8 + (b & 1)*4))}")
    def lloop(s, f, n, end):
        a = s.a; L = a.new("L_ll"); a.lab(L)
        s.call(f); s.W(n); s.B()
        a(f"s_cmp_lt_u32 {sLI}, {end}\ns_cbranch_scc1 {L}")
    def unit(s, f, n): s.call(f); s.W(n); s.B()
    def unit_chk(s, f, n, b):
        s.need_block(b); s.call("F_FPRE"); s.call(f); s.W(n); s.call("F_FCHK"); s.B()
    def init_flags(s):
        a = s.a; L = a.new("L_if")
        a(f"s_mov_b32 {sSIG}, 0"); s.call("F_SIG")
        a(f"""s_cmp_lg_u32 {sW}, 0
        s_cbranch_scc1 {L}
        s_waitcnt vmcnt(0)
        s_lshl_b32 {sT0}, {sPM}, 4
        v_mov_b32 v{vT+3}, {sT0}
        v_mov_b32 v{vT+2}, 1
        s_mov_b64 exec, 1
        buffer_atomic_add v{vT+2}, v{vT+3}, {srd(SDBG)}, 0 offen sc1
        s_mov_b64 exec, -1""")
        a.lab(L)
    def att_loader_first(s):
        a = s.a; L = a.new("L_ll"); X = a.new("L_lx"); R = a.new("L_lr"); S = a.new("L_ls"); D = a.new("L_ld")
        a.lab(L)
        a(f"s_cmp_eq_u32 {sLI}, {sCHK}\ns_cbranch_scc1 {X}")
        s.call("F_IAM"); s.W(8)
        a.lab(R)
        s.B()
        a(f"s_cmp_lt_u32 {sLI}, 15\ns_cbranch_scc1 {L}\ns_branch {D}")
        a.lab(X)
        a(f"s_lshl_b32 {sT2}, {sPM}, 4\nv_mov_b32 v{vT+1}, {sT2}\ns_mov_b32 {sCNT}, 0x40000\ns_cmp_lg_u32 {sW}, 0\ns_cbranch_scc1 {S}")
        a(f"buffer_load_dword v{vT}, v{vT+1}, {srd(SDBG)}, 0 offen sc1")
        a.lab(S)
        s.call("F_IAM"); s.W(8)
        a(f"s_cmp_lg_u32 {sW}, 0\ns_cbranch_scc1 {R}")
        P = a.new("L_lp"); a.lab(P)
        a(f"""v_readfirstlane_b32 {sT0}, v{vT}
        s_cmp_ge_u32 {sT0}, 16
        s_cbranch_scc1 {R}
        s_sub_u32 {sCNT}, {sCNT}, 1
        s_cmp_eq_u32 {sCNT}, 0
        s_cbranch_scc1 {R}
        s_sleep 8
        buffer_load_dword v{vT}, v{vT+1}, {srd(SDBG)}, 0 offen sc1
        s_waitcnt vmcnt(0)
        s_branch {P}""")
        a.lab(D)

    def xoff(s, dst, tmp, tmp2, perm):
        a = s.a
        a(f"""v_bfe_u32 v{dst}, v0, 3, 1
        s_mul_i32 {sT0}, {sW}, 6
        v_add_u32 v{dst}, {sT0}, v{dst}
        v_lshlrev_b32 v{dst}, 10, v{dst}
        v_and_b32 v{tmp}, 7, v0
        v_lshl_add_u32 v{dst}, v{tmp}, 6, v{dst}""")
        if perm: a(f"v_lshrrev_b32 v{tmp2}, 5, v0\nv_bfe_u32 v{tmp}, v0, 4, 1\nv_lshl_or_b32 v{tmp2}, v{tmp}, 1, v{tmp2}")
        else: a(f"v_lshrrev_b32 v{tmp2}, 4, v0")
        a(f"""v_lshrrev_b32 v{tmp}, 2, v0
        v_sub_u32 v{tmp}, 0, v{tmp}
        v_and_b32 v{tmp}, 3, v{tmp}
        v_xor_b32 v{tmp}, v{tmp}, v{tmp2}
        v_lshl_add_u32 v{dst}, v{tmp}, 4, v{dst}""")
    def gemm_addr_func(s, name, tail):
        a = s.a; a.lab(name)
        s.xoff(vA0, vM, vM + 1, False)
        sh = 10 if tail else 11
        a(f"""v_lshlrev_b32 v{vA1}, {sh}, v{vM+1}
        v_bfe_u32 v{vM}, v0, 2, 2
        v_lshl_add_u32 v{vA1}, v{vM}, 6, v{vA1}
        v_and_b32 v{vM}, 1, v{vM+1}
        v_lshl_add_u32 v{vA1}, v{vM}, 5, v{vA1}
        v_and_b32 v{vM}, 3, v0
        v_lshl_add_u32 v{vA1}, v{vM}, 3, v{vA1}
        v_add_u32 v{vA1}, 24576, v{vA1}
        v_xor_b32 v{vA2}, 32, v{vA1}
        s_mov_b32 {sCS}, 0
        s_setpc_b64 {LR1}""")
    def adv_scalar(s):
        return [f"s_add_u32 {sCS}, {sCS}, 1", f"s_and_b32 {sCS}, {sCS}, 3", f"s_cselect_b32 {sDL}, {sT3}, {sT2}"]
    def adv_consts(s): s.a(f"s_mov_b32 {sT3}, {SLOT}\ns_mov_b32 {sT2}, {-3*SLOT & 0xffffffff}")
    def adv_vec(s): return [f"v_add_u32 v{r}, {sDL}, v{r}" for r in (vA0, vA1, vA2)]

    def gemm_func(s, name, tail, hook):
        a = s.a; q = LQ(a)
        NT = 4 if tail else 8; NF = 2 * NT
        R = 8; LA = 4 if tail else s.o.get("gla", 5)
        vX = vS
        wreg = [88, 92, 96, 100, 104, 108, 36, 40]
        kso = 4096 if tail else 8192
        def rdW(f, sec):
            ks, nt = (f % NF) // NT, f % NT
            r = wreg[f % R]; ad = vA1 if nt % 2 == 0 else vA2
            return lambda: q.rd(f"ds_read_b64_tr_b16 {vr(r + 2*sec, 2)}, v{ad} offset:{ks*kso + (nt>>1)*512 + sec*256}", ("W", f % NF))
        def rdX(ks, mt):
            return lambda: q.rd(f"ds_read_b128 {vr(vX + ks*12 + mt*4)}, v{vA0} offset:{mt*2048 + ks*512}", ("X", ks))
        def ins(t): return lambda: a(t)
        def grp(f, fill, zero=False):
            ks, nt = f // NT, f % NT
            q.need(("W", f), ("X", ks))
            for mt in range(3):
                a(mfma(acc(nt, mt), wreg[f % R], vX + ks*12 + mt*4, "0" if (zero and ks == 0) else acc(nt, mt)))
                for x in fill[mt]: x()
        cut = NF - LA
        def part1(zero):
            sc = s.adv_scalar() + [f"s_add_u32 {sCI}, {sCI}, 1"]
            for f in range(cut):
                fill = [[rdW(f + LA, 0)], [rdW(f + LA, 1)], []]
                if f < 3: fill[2].append(rdX(1, f))
                if tail:
                    if f < 2: fill[0].append(ins(sc[2*f])); fill[1].append(ins(sc[2*f+1]))
                elif 3 <= f < 7: fill[2].append(ins(sc[f - 3]))
                if f == cut - 1:
                    av = s.adv_vec()
                    fill = [[rdW(f + LA, 0), rdW(f + LA, 1)], [ins(av[0]), ins(av[1])], [ins(av[2]), ins(f"s_cmp_lg_u32 {sCI}, {sSTOP}")]]
                grp(f, fill, zero)
        def part2(reads):
            for f in range(cut, NF):
                fill = [[], [], []]
                if reads:
                    if f == cut: fill = [[rdX(0, 0), rdX(0, 1)], [rdX(0, 2), rdW(f + LA, 0)], [rdW(f + LA, 1)]]
                    else: fill = [[rdW(f + LA, 0)], [rdW(f + LA, 1)], []]
                grp(f, fill)
        L = a.new("L_gl"); Bk = a.new("L_gb"); ST = a.new("L_gs"); F = a.new("L_gf")
        a.lab(name)
        s.stamp()
        for mt in range(3): rdX(0, mt)()
        for f in range(LA): rdW(f, 0)(); rdW(f, 1)()
        s.adv_consts()
        a(f"s_mov_b32 {sCI}, 0")
        q0 = list(q.q)
        part1(not tail)
        q1 = list(q.q)
        a(f"s_cbranch_scc0 {ST}")
        a.l.append(".p2align 6") if s.o.get("al") else None
        a.lab(L)
        a("s_barrier")
        a.lab(Bk)
        part2(True)
        assert q.q == q0, (q.q, q0)
        part1(False)
        assert q.q == q1
        a(f"s_cbranch_scc1 {L}")
        a.lab(ST)
        a(f"s_cmp_eq_u32 {sCI}, {sCN}\ns_cbranch_scc1 {F}")
        hook()
        a(f"s_mov_b32 {sSTOP}, {sCN}\ns_branch {Bk}")
        a.lab(F)
        part2(False)
        a("s_nop 6")
        s.stamp()
        a(f"s_setpc_b64 {LR2}")

    def pack_mt(s, mt, npair, scale, dst):
        a = s.a
        for pr in range(npair):
            d = dst(mt, pr); x = acc(2 * pr, mt); y = acc(2 * pr + 1, mt)
            if scale is not None:
                for b in (x, x + 2, y, y + 2): a(f"v_pk_mul_f32 {vr(b, 2)}, {vr(b, 2)}, {scale}")
            a(f"v_cvt_pk_bf16_f32 v{d}, v{x}, v{x+1}\nv_cvt_pk_bf16_f32 v{d+2}, v{y}, v{y+1}")
            a(f"v_cvt_pk_bf16_f32 v{d+1}, v{x+2}, v{x+3}\nv_cvt_pk_bf16_f32 v{d+3}, v{y+2}, v{y+3}")
            if pr:
                e = dst(mt, pr - 1); a(f"v_permlane16_swap_b32 v{e}, v{e+2}\nv_permlane16_swap_b32 v{e+1}, v{e+3}")
        e = dst(mt, npair - 1)
        a(("s_nop 0\n" if npair > 1 else "s_nop 1\n") + f"v_permlane16_swap_b32 v{e}, v{e+2}\nv_permlane16_swap_b32 v{e+1}, v{e+3}")

    def misc_funcs(s):
        a = s.a
        a.lab("F_PACKQ")
        a(f"v_mov_b32 v{vM}, {f32(QSCALE)}\nv_mov_b32 v{vM+1}, {f32(QSCALE)}")
        for mt in range(3): s.pack_mt(mt, 4, vr(vM, 2), qreg)
        a(f"s_setpc_b64 {LR1}")
        for mt in range(3):
            a.lab(f"F_EPI{mt}")
            if mt == 0:
                s.xoff(vA0, vM, vM + 1, True)
                a(f"""s_lshl_b32 {sT0}, {sSEL}, 1
                s_add_u32 {sT0}, {sT0}, {sG}
                s_lshl_b32 {sT0}, {sT0}, 3
                s_add_u32 {sT0}, {sT0}, {sHS}
                s_lshl_b32 {sT1}, {sPM}, 5
                s_add_u32 {sT0}, {sT0}, {sT1}
                s_mul_i32 {sCS}, {sT0}, 49152
                s_add_u32 {sCS}, {sCS}, {WS_O}""")
            a(f"v_rcp_f32 v{vM}, v{vL+mt*4}\ns_add_u32 {sDL}, {sCS}, 24576\nv_mov_b32 v{vM+1}, v{vM}")
            s.pack_mt(mt, 4, vr(vM, 2), qreg)
            for ks in range(4):
                a(f"buffer_store_dwordx4 {vr(qreg(mt, ks))}, v{vA0}, {srd(SWS)}, {sCS if ks < 2 else sDL} offen offset:{(ks & 1)*512} {s.o.get('fo', 'sc1')}")
            a(f"s_add_u32 {sCS}, {sCS}, 2048\ns_setpc_b64 {LR1}")
        a.lab("F_ASET")
        a(f"""v_lshrrev_b32 v{vM+2}, 4, v0
        s_lshr_b32 {sT0}, {sW}, 1
        s_lshl_b32 {sT0}, {sT0}, 13
        v_bfe_u32 v{vM}, v0, 3, 1
        v_lshrrev_b32 v{vM+1}, 1, v{vM+2}
        v_and_b32 v{vM+3}, 1, v{vM+2}
        v_lshl_or_b32 v{vA0}, v{vM+3}, 1, v{vM+1}
        v_xor_b32 v{vA0}, v{vA0}, v{vM}
        v_lshlrev_b32 v{vA0}, 4, v{vA0}
        v_lshl_add_u32 v{vA0}, v{vM}, 11, v{vA0}
        v_and_b32 v{vM}, 7, v0
        v_lshl_add_u32 v{vA0}, v{vM}, 6, v{vA0}
        v_add_u32 v{vA0}, {sT0}, v{vA0}
        v_lshlrev_b32 v{vA1}, 11, v{vM+1}
        v_bfe_u32 v{vM}, v0, 2, 3
        v_lshl_add_u32 v{vA1}, v{vM}, 6, v{vA1}
        v_lshl_add_u32 v{vA1}, v{vM+3}, 5, v{vA1}
        v_and_b32 v{vM}, 3, v0
        v_lshl_add_u32 v{vA1}, v{vM}, 3, v{vA1}
        v_add_u32 v{vA1}, {sT0}, v{vA1}
        v_xor_b32 v{vA2}, 32, v{vA1}
        s_mov_b32 {sCS}, 0""")
        for r in range(4): a(f"v_mov_b32 v{vONES+r}, 0x3f803f80")
        a(f"s_setpc_b64 {LR1}")

    def pstore(s, i0, i1):
        a = s.a
        if i0 == 0:
            a(f"""s_mul_i32 {sCS}, {sWG}, 49152
            s_mul_i32 {sT1}, {sW}, 12288
            s_add_u32 {sCS}, {sCS}, {sT1}
            s_add_u32 {sCS}, {sCS}, {WS_P}
            v_lshlrev_b32 v{vA0}, 4, v0""")
        for i in range(i0, i1):
            if i % 4 == 0 and i: a(f"s_add_u32 {sCS}, {sCS}, 4096")
            a(f"buffer_store_dwordx4 {vr(vACC + 48 + 4*i)}, v{vA0}, {srd(SWS)}, {sCS} offen offset:{(i % 4)*1024} sc1")

    def att_func(s):
        a = s.a; q = LQ(a)
        def S(par, qt, kt=0): return vS + par * 24 + qt * 8 + kt * 4
        ring = lambda f: vRING + (f % 4) * 4
        def rds(f, kb=16384, vb=0):
            f %= 16
            if f < 8:
                return [lambda: q.rd(f"ds_read_b128 {vr(ring(f))}, v{vA0} offset:{kb + (f >> 2)*4096 + (f & 3)*512}", f)]
            dt = f - 8; ad = vA1 if dt % 2 == 0 else vA2
            return [lambda sec=sec: q.rd(f"ds_read_b64_tr_b16 {vr(ring(f) + 2*sec, 2)}, v{ad} offset:{vb + sec*4096 + (dt >> 1)*512}", f) for sec in range(2)]
        def ins(t): return lambda: a(t)
        def qk(par, f, c0, fill):
            kt, ks = f >> 2, f & 3
            q.need(f)
            for qt in range(3):
                d = S(par, qt, kt)
                a(mfma(d, ring(f), qreg(qt, ks), (c0(qt) if ks == 0 else d)))
                for x in fill[qt]: x()
        def rowmax(par, qt, dst, tmp):
            b = S(par, qt)
            a(f"v_max3_f32 v{dst}, v{b}, v{b+1}, v{b+2}\nv_max3_f32 v{dst}, v{dst}, v{b+3}, v{b+4}\nv_max3_f32 v{dst}, v{dst}, v{b+5}, v{b+6}\nv_max_f32 v{dst}, v{dst}, v{b+7}")
            a(f"v_mov_b32 v{tmp}, v{dst}\ns_nop 1\nv_permlane16_swap_b32 v{dst}, v{tmp}\nv_max_f32 v{dst}, v{dst}, v{tmp}")
            a(f"v_mov_b32 v{tmp}, v{dst}\ns_nop 1\nv_permlane32_swap_b32 v{dst}, v{tmp}\nv_max_f32 v{dst}, v{dst}, v{tmp}")
        a.lab("F_ATT")
        s.stamp()
        for f in range(3):
            for x in rds(f, kb=0): x()
        s.adv_consts()
        zero = [f"v_pk_mov_b32 {vr(r, 2)}, 0, 0" for r in list(range(vL, vL + 12, 2)) + list(range(vACC, vACC + 96, 2))]
        for z in zero[:14]: a(z)
        zi = iter(zero[14:])
        for f in range(8):
            r = rds(f + 3, kb=0) if f + 3 < 8 else rds(f + 3 - 8)
            if f + 3 >= 8:
                pass
            fill = [r + [ins(next(zi))], [ins(next(zi)), ins(next(zi))], [ins(next(zi)), ins(next(zi))]]
            qk(0, f, lambda qt: "0", fill)
        assert next(zi, None) is None
        a("s_nop 5")
        for qt in range(3):
            rowmax(0, qt, vM + qt, vM + 4)
            for r in range(8): a(f"v_sub_f32 v{S(0,qt)+r}, v{S(0,qt)+r}, v{vM+qt}")
            for r in range(4): a(f"v_sub_f32 v{vCI+qt*4+r}, 0, v{vM+qt}")
        a(f"s_mov_b32 {sCI}, 0")
        q0 = list(q.q)
        def ex(par, i): return lambda: a(f"v_exp_f32 v{vS+par*24+i}, v{vS+par*24+i}")
        def cv(par, pr):
            qt, k = pr // 4, pr % 4; b = S(par, qt)
            return lambda: a(f"v_cvt_pk_bf16_f32 v{b+k}, v{b+2*k}, v{b+2*k+1}")
        def pv(par, f, fill):
            q.need(f)
            for qt in range(3):
                a(mfma(acc(f - 8, qt), ring(f), S(par, qt), acc(f - 8, qt)))
                for x in fill[qt]: x()
        def ones(par, qt): a(mfma(vL + qt*4, vONES, S(par, qt), vL + qt*4))
        rare = []
        def step(par):
            nx = par ^ 1
            av = s.adv_vec()
            for f in range(8):
                fill = []
                r = rds(f + 3)
                for qt in range(3):
                    i = f * 3 + qt; x = []
                    if qt < len(r): x.append(r[qt])
                    x.append(ex(par, i))
                    if i >= 2 and i % 2 == 0: x.append(cv(par, i // 2 - 1))
                    if f == 4 and qt >= 1: x.append(ins(av[qt - 1]))
                    if f == 4 and qt == 2: x += [ins(av[2]), ins("s_waitcnt vmcnt(0)"), ins("s_barrier")]
                    fill.append(x)
                qk(nx, f, lambda qt: vCI + qt*4, fill)
            ones(par, 0); cv(par, 11)(); ones(par, 1); a("s_nop 0"); ones(par, 2)
            regs = [S(nx, qt, kt) + r for kt in range(2) for qt in range(3) for r in range(4)]
            m0_, m1_ = vM, vM + 1
            mx = [f"v_max3_f32 v{m0_}, v{regs[0]}, v{regs[1]}, v{regs[2]}", f"v_max3_f32 v{m1_}, v{regs[3]}, v{regs[4]}, v{regs[5]}"]
            rest = regs[6:]
            for i in range(0, len(rest), 2):
                m = m0_ if (i // 2) % 2 == 0 else m1_
                mx.append(f"v_max3_f32 v{m}, v{m}, v{rest[i]}, v{rest[i+1]}")
            mx += [f"v_max_f32 v{m0_}, v{m0_}, v{m1_}", f"v_cmp_lt_f32 vcc, {f32(THR)}, v{m0_}"]
            mx = s.adv_scalar() + mx
            mx += [f"s_cmp_eq_u32 {sCI}, 7"] if par == 0 else [f"s_add_u32 {sCI}, {sCI}, 1"]
            mi = iter(mx)
            def nm():
                x = next(mi, None)
                if x: a(x)
            for f in range(8, 16):
                r = rds(f + 3)
                fill = [[r[0], nm], ([r[1]] if len(r) > 1 else [nm]) + ([nm] if f >= 12 else []), [nm]]
                pv(par, f, fill)
            assert next(mi, None) is None
            R_ = a.new("L_rare"); Bk = a.new("L_back")
            a(f"s_cbranch_vccnz {R_}")
            a.lab(Bk)
            rare.append((R_, Bk, nx))
        L = a.new("L_al"); F = a.new("L_af")
        for x in s.adv_scalar(): a(x)
        a.lab(L)
        step(0)
        assert q.q == q0, (q.q, q0)
        a(f"s_cbranch_scc1 {F}")
        step(1)
        assert q.q == q0
        a(f"s_branch {L}")
        for (R_, Bk, nx) in rare:
            a.lab(R_)
            a("s_nop 7")
            for qt in range(3):
                rowmax(nx, qt, vM + qt, vM + 4)
                a(f"v_max_f32 v{vM+qt}, 0, v{vM+qt}\nv_sub_f32 v{vM+5}, 0, v{vM+qt}\nv_exp_f32 v{vM+5}, v{vM+5}")
                for r in range(8): a(f"v_sub_f32 v{S(nx,qt)+r}, v{S(nx,qt)+r}, v{vM+qt}")
                for r in range(4): a(f"v_sub_f32 v{vCI+qt*4+r}, v{vCI+qt*4+r}, v{vM+qt}")
                for r in range(4): a(f"v_mul_f32 v{vL+qt*4+r}, v{vL+qt*4+r}, v{vM+5}")
                for dt in range(8):
                    for r in range(4): a(f"v_mul_f32 v{acc(dt,qt)+r}, v{acc(dt,qt)+r}, v{vM+5}")
            a(f"s_nop 1\ns_branch {Bk}")
        a.lab(F)
        for f in range(8, 11):
            for x in rds(f, vb=16384): x()
        for i in range(24):
            ex(1, i)()
            if i >= 2 and i % 2 == 0: cv(1, i // 2 - 1)()
        ones(1, 0); cv(1, 11)(); ones(1, 1); a("s_nop 0"); ones(1, 2)
        for f in range(8, 16):
            r = rds(f + 3, vb=16384) if f + 3 < 16 else [lambda: None, lambda: None]
            pv(1, f, [[r[0]], [r[1]], []])
        a("s_nop 6")
        s.stamp()
        a(f"s_setpc_b64 {LR2}")

    def cgemm(s, n, stop, sig=0):
        s.a(f"s_mov_b32 {sCN}, {n}\ns_mov_b32 {sSTOP}, {stop}\ns_mov_b32 {sSIG}, {sig}")
        s.call("F_GEMM", LR2)
    def catt(s, sel):
        s.a(f"s_mov_b32 {sSEL}, {sel}"); s.call("F_ATT", LR2)
    def epi_in(s, f, sig):
        s.call(f); s.call("F_EPI0"); s.B()
        s.call(f); s.call("F_EPI1"); s.W(18); s.B()
        s.call(f); s.call("F_EPI2"); s.W(18); s.B()
        s.call(f); s.W(14); s.B()
        s.call(f); s.W(10); s.B()
        s.a(f"s_mov_b32 {sSIG}, {sig}"); s.call("F_SIG")
    def o_loader(s, b0):
        a = s.a
        X = a.new("L_ox")
        a(f"s_cmp_ge_u32 {sLI}, 7\ns_cbranch_scc1 {X}")
        s.lloop("F_IO", 10, 7)
        a.lab(X)
        s.unit_chk("F_IO", 10, b0 + 1)
        s.lloop("F_IO", 10, 15)
        s.unit_chk("F_IO", 10, b0 + 2)
        s.lloop("F_IO", 10, 24)
    def final_poll(s):
        a = s.a
        a(f"""s_mov_b32 {sBIT}, 4
        s_xor_b32 {sT0}, {sG}, 1
        s_lshl_b32 {sT0}, {sT0}, 3
        s_add_u32 {sT0}, {sT0}, {sHS}
        s_lshl_b32 {sNEED}, 1, {sT0}
        s_or_b32 {sNEED}, {sNEED}, 0xff00""")
        s.call("F_FPRE"); s.W(0); s.call("F_FCHK")
    def tail_loader(s):
        s.setO(48, 0)
        s.call("F_IT")
        s.lloop("F_IT", 8, 16)
        s.W(0); s.B()
        s.a("s_branch L_finish")

    def programs(s):
        a = s.a
        a.lab("L_g1t1")
        s.setQ(0, 0); s.call("F_IQ"); s.lloop("F_IQ", 10, 16)
        s.setA(0, 0); s.unit("F_IA0", 8); s.unit("F_IAM", 8)
        s.att_loader_first(); s.unit("F_IAL", 8)
        s.setQ(1, 0); s.unit("F_IQ", 10); s.call("F_GADR"); s.unit("F_IQ", 10)
        s.cgemm(16, 1); s.call("F_PACKQ"); s.call("F_ASET"); s.B(); s.catt(1)
        s.B(); s.setO(24, 2); s.epi_in("F_IO", 3); s.o_loader(3)
        s.W(0); s.B()
        s.B(); s.final_poll(); s.B()
        a.lab("L_tail_loader")
        s.tail_loader()
        a.lab("L_g1t0")
        s.init_flags(); s.call("F_GADR"); s.B()
        s.cgemm(16, 16); s.call("F_PACKQ"); s.call("F_ASET"); s.B(); s.catt(0)
        s.B(); s.setQ(1, 2); s.epi_in("F_IQ", 1); s.lloop("F_IQ", 10, 16)
        s.setA(1, 0); s.unit("F_IA0", 8); s.lloop("F_IAM", 8, 15)
        s.unit_chk("F_IAL", 8, 3)
        s.setO(24, 0); s.unit("F_IO", 10); s.call("F_GADR"); s.unit("F_IO", 10)
        s.cgemm(24, 1)
        s.pstore(0, 12); s.W(0); s.B()
        a(f"s_mov_b32 {sSIG}, 7"); s.call("F_SIG")
        s.stamp()
        s.B()
        a.lab("L_tail_compute")
        s.call("F_TADR"); s.B()
        a(f"s_mov_b32 {sCN}, 16\ns_mov_b32 {sSTOP}, {s.o.get('phook', 6)}")
        s.call("F_TAIL", LR2)
        vP = vACC + 48
        a("s_waitcnt vmcnt(0)")
        for r in range(0, 48, 2): a(f"v_pk_add_f32 {vr(vACC+r, 2)}, {vr(vACC+r, 2)}, {vr(vP+r, 2)}")
        dst = lambda mt, pr: vS + (mt * 2 + pr) * 4
        a(f"""v_and_b32 v{vT}, 15, v0
        v_lshlrev_b32 v{vT}, 12, v{vT}
        v_lshrrev_b32 v{vT+2}, 5, v0
        v_bfe_u32 v{vT+3}, v0, 4, 1
        v_lshl_or_b32 v{vT+2}, v{vT+3}, 1, v{vT+2}
        v_lshl_add_u32 v{vT}, v{vT+2}, 4, v{vT}
        s_mul_i32 {sT0}, {sMB}, 192
        s_mul_i32 {sT1}, {sW}, 48
        s_add_u32 {sT0}, {sT0}, {sT1}
        s_lshl_b32 {sT0}, {sT0}, 12
        s_lshl_b32 {sT1}, {sP}, 11
        s_add_u32 {sT0}, {sT0}, {sT1}
        s_lshl_b32 {sT1}, {sHS}, 8
        s_add_u32 {sT0}, {sT0}, {sT1}
        s_lshl_b32 {sT1}, {sG}, 7
        s_add_u32 {sT0}, {sT0}, {sT1}""")
        for mt in range(3):
            s.pack_mt(mt, 2, None, dst)
            for pr in range(2):
                a(f"buffer_store_dwordx4 {vr(dst(mt, pr))}, v{vT}, {srd(SOUT)}, {sT0} offen offset:{pr*64}")
            if mt < 2: a(f"s_add_u32 {sT0}, {sT0}, 65536")
        a("s_branch L_finish")
        a.lab("L_g2t0")
        s.setQ(1, 0); s.call("F_IQ"); s.lloop("F_IQ", 10, 16)
        s.setQ(0, 0); s.unit("F_IQ", 10); s.call("F_GADR"); s.unit("F_IQ", 10)
        s.cgemm(16, 1); s.call("F_PACKQ"); s.call("F_ASET"); s.B(); s.catt(0)
        for i in range(3): s.call(f"F_EPI{i}")
        s.call("F_GADR"); s.B()
        s.cgemm(24, 4, 1)
        s.B(); s.setA(1, 2); s.call("F_IAM"); s.pstore(0, 6)
        s.B(); s.call("F_IAM"); s.pstore(6, 12); s.W(20)
        s.B(); s.call("F_IAM"); s.W(14); s.B()
        s.lloop("F_IAM", 8, 15); s.unit("F_IAL", 8)
        s.W(0); s.B()
        s.B(); s.final_poll(); s.B()
        a("s_branch L_tail_compute")
        a.lab("L_g2t1")
        s.init_flags(); s.call("F_GADR"); s.B()
        s.cgemm(16, 16)
        s.B(); s.setQ(0, 2); s.call("F_IQ"); s.call("F_PACKQ"); s.B()
        s.lloop("F_IQ", 10, 16)
        s.setA(0, 0); s.unit("F_IA0", 8); s.unit("F_IAM", 8)
        s.att_loader_first(); s.unit_chk("F_IAL", 8, 0)
        s.setO(0, 0); s.o_loader(0)
        s.setA(1, 0); s.unit("F_IA0", 8); s.call("F_ASET"); s.unit("F_IAM", 8)
        s.catt(1)
        for i in range(3): s.call(f"F_EPI{i}")
        s.W(0); s.B()
        a(f"s_mov_b32 {sSIG}, 7"); s.call("F_SIG")
        s.stamp()
        s.B()
        a("s_branch L_tail_loader")

    def build(s):
        K = NAME + "_kernel"; a = s.a
        s.setup(K)
        s.programs()
        s.loader_funcs()
        s.gemm_addr_func("F_GADR", False); s.gemm_addr_func("F_TADR", True)
        def hk():
            X = a.new("L_hk")
            a("s_waitcnt vmcnt(0)\ns_barrier")
            a(f"s_cmp_eq_u32 {sSIG}, 0\ns_cbranch_scc1 {X}"); s.call("F_SIG"); a.lab(X)
        s.gemm_func("F_GEMM", False, hk)
        s.misc_funcs()
        s.att_func()
        def hk2():
            a("s_barrier")
            a(f"""s_xor_b32 {sT0}, {sWG}, 8
            s_mul_i32 {sT0}, {sT0}, 49152
            s_mul_i32 {sT1}, {sW}, 12288
            s_add_u32 {sT0}, {sT0}, {sT1}
            s_add_u32 {sT0}, {sT0}, {WS_P}
            v_lshlrev_b32 v{vT}, 4, v0""")
            for i in range(12):
                if i % 4 == 0 and i: a(f"s_add_u32 {sT0}, {sT0}, 4096")
                a(f"buffer_load_dwordx4 {vr(vACC + 48 + 4*i)}, v{vT}, {srd(SWS)}, {sT0} offen offset:{(i % 4)*1024} sc1")
        s.gemm_func("F_TAIL", True, hk2)
        s.stamp_funcs()
        s.finish()
        l = a.l
        if s.o.get("nocomp"): l = [x for x in l if not re.match(r"\s+(v_mfma|ds_read|v_exp|v_cvt_pk|v_max3|s_cbranch_vccnz)", x)]
        if s.o.get("noload"): l = [x for x in l if not (re.match(r"\s+buffer_load.* lds", x) or "s_cbranch_vccnz" in x)]
        if s.o.get("nostore"): l = [x for x in l if not re.match(r"\s+buffer_store_dwordx4", x)]
        out = ["; @launch grid=(256,1,1) block=(512,1,1) lds=163840", '.amdgcn_target "amdgcn-amd-amdhsa--gfx950"', ".text"] + l
        out += ['.section .rodata,"a"', ".p2align 6", f""".amdhsa_kernel {K}
  .amdhsa_next_free_vgpr 256
  .amdhsa_next_free_sgpr 102
  .amdhsa_accum_offset 256
  .amdhsa_group_segment_fixed_size 0
  .amdhsa_kernarg_size 104
  .amdhsa_user_sgpr_count 2
  .amdhsa_user_sgpr_kernarg_segment_ptr 1
  .amdhsa_system_sgpr_workgroup_id_x 1
.end_amdhsa_kernel"""]
        return "\n".join(out) + "\n"

if __name__ == "__main__":
    import argparse, json
    ap = argparse.ArgumentParser()
    ap.add_argument("-o", default="k.s"); ap.add_argument("--stamps", action="store_true"); ap.add_argument("--opts", default="{}")
    A = ap.parse_args()
    open(A.o, "w").write(Gen(A.stamps, json.loads(A.opts)).build())
```

```python
import sys, re, math, struct
NAME = "concat_heads__mha_block_cached__gqa_block_cached__near_ridge"

SLOT = 40960
WS_F = 0x0
WS_O = 0x2000000
WS_P = 0x4000000
WS_T = 0x8000000
WS_SIZE = 308281344
THR = 8.0
QSCALE = math.log2(math.e) / math.sqrt(128.0)
def f32(x): return "0x%08x" % struct.unpack("<I", struct.pack("<f", x))[0]

class Asm:
    def __init__(s): s.l = []; s.uid = 0
    def __call__(s, t):
        for x in t.split("\n"):
            x = x.strip()
            if x: s.l.append("    " + x)
    def lab(s, n): s.l.append(n + ":")
    def c(s, t): s.l.append("    ; " + t)
    def new(s, p): s.uid += 1; return f"{p}_{s.uid}"

class LQ:
    def __init__(s, a): s.a = a; s.q = []
    def rd(s, ins, tag):
        s.a(ins); s.q.append(tag); assert len(s.q) <= 15, "lgkm overflow"
    def need(s, *tags):
        idx = [i for i, t in enumerate(s.q) if t in tags]
        if not idx: return
        n = len(s.q) - 1 - idx[-1]
        s.a(f"s_waitcnt lgkmcnt({n})"); s.q = s.q[idx[-1] + 1:]

def vr(b, n=4): return f"v[{b}:{b+n-1}]"
def mfma(d, a_, b_, c): return f"v_mfma_f32_16x16x32_bf16 {vr(d)}, {vr(a_)}, {vr(b_)}, {c if isinstance(c, str) else vr(c)}"

sWG, sW, sP, sG, sMB, sHS, sROT, sPM, sTEAM, sCHK = "s2", "s3", "s4", "s5", "s6", "s7", "s8", "s9", "s10", "s11"
SX, SWQ, SWO, SK, SV, SWS, SOUT, SDBG = 28, 32, 36, 40, 44, 48, 52, 56
def srd(b): return f"s[{b}:{b+3}]"
sT0, sT1, sT2, sT3 = "s60", "s61", "s62", "s63"
sLS, sLI, sBA, sBB, sROFF, sKST, sA, sB0, sB1, sM0, sKB, sTK, sTV, sW1K = \
    "s64", "s65", "s66", "s67", "s68", "s69", "s70", "s71", "s72", "s73", "s74", "s75", "s76", "s77"
sCS, sCI, sCN, sSTOP, sDL, sSIG, sSEL = "s12", "s13", "s14", "s15", "s16", "s17", "s18"
sFLG, sNEED, sBIT, sCNT = "s19", "s20", "s21", "s22"
LR1, LR2 = "s[24:25]", "s[26:27]"
sSTAMP = 80
sSTR, sXOR = "s78", "s79"
sHH4, sCOL, sSTOP2 = "s23", "s0", "s1"
sPX = "s95"

vA0, vA1, vA2 = 1, 2, 3
vT = 4
vONES = 8
vCI = 12
vL = 24
vRING = 36
vM = 52
vLX, vLWQ, vLO, vLWO, vLK, vLV = 58, 59, 60, 61, 62, 63
vS = 64
vACC = 112
vQ = 208
def acc(nt, mt): return vACC + (nt * 3 + mt) * 4
def qreg(mt, ks): return vQ + (mt * 4 + ks) * 4

class Gen:
    def __init__(s, stamps=False, opts=None):
        s.stamps = stamps; s.a = Asm(); s.o = opts or {}

    def stamp(s):
        if s.stamps: s.a("s_call_b64 s[96:97], F_STAMP")
    def trace(s, tag=0):
        if s.o.get("trace", 0) > (1 if tag else 0): s.a(f"s_mov_b32 s99, {tag}\ns_call_b64 s[96:97], F_TRACE")
    def stamp_funcs(s):
        a = s.a
        if s.o.get("trace"):
            a.lab("F_TRACE")
            a(f"""s_cmp_lg_u32 {sW}, 1
            s_cbranch_scc1 L_trx
            s_memrealtime s[100:101]
            s_waitcnt lgkmcnt(0)
            s_and_b32 s100, s100, 0xfffffffc
            s_or_b32 s100, s100, s99
            v_mov_b32 v{vT+2}, s100
            v_mov_b32 v{vT+3}, 0
            buffer_store_dword v{vT+2}, v{vT+3}, {srd(SWS)}, s98 offen
            s_add_u32 s98, s98, 4""")
            a.lab("L_trx")
            a("s_setpc_b64 s[96:97]")
        if not s.stamps: return
        a.lab("F_STAMP")
        a(("s_memtime" if s.o.get("cyc") else "s_memrealtime") + " s[100:101]\ns_waitcnt lgkmcnt(0)")
        for i in range(sSTAMP + 14, sSTAMP, -1): a(f"s_mov_b32 s{i}, s{i-1}")
        a(f"s_mov_b32 s{sSTAMP}, s100\ns_setpc_b64 s[96:97]")
    def finish(s):
        a = s.a
        a.lab("L_finish")
        if "spinto" in s.o:
            L = a.new("L_spin"); a.lab(L)
            a(f"s_memrealtime s[100:101]\ns_waitcnt lgkmcnt(0)\ns_sub_u32 s100, s100, s98\ns_cmp_lt_u32 s100, {s.o['spinto']}\ns_cbranch_scc1 {L}")
        if s.stamps:
            a("s_waitcnt vmcnt(0)"); s.stamp()
            a(f"s_lshl_b32 {sT0}, {sWG}, 1\ns_add_u32 {sT0}, {sT0}, {sTEAM}\ns_lshl_b32 {sT0}, {sT0}, 2\ns_add_u32 {sT0}, {sT0}, {sW}\ns_lshl_b32 {sT0}, {sT0}, 6\ns_add_u32 {sT0}, {sT0}, {WS_T}")
            a(f"v_mov_b32 v{vT}, 0")
            a(f"s_mov_b32 s{sSTAMP+15}, 0")
            for i in range(16):
                a(f"v_mov_b32 v{vT+1}, s{sSTAMP+i}\nbuffer_store_dword v{vT+1}, v{vT}, {srd(SWS)}, {sT0} offen offset:{4*i}\ns_nop 1")
            a("s_waitcnt vmcnt(0)")
        a.lab("L_end")
        a("s_endpgm")

    def setup(s, K):
        a = s.a
        a.l.append(f".globl {K}\n.p2align 8\n.type {K},@function\n{K}:")
        a(f"""s_cmp_ge_u32 {sWG}, 256
        s_cbranch_scc1 L_end
        s_and_b32 {sT2}, {sWG}, 7
        s_lshr_b32 {sP}, {sT2}, 2
        s_mul_i32 {sT0}, {sP}, 40
        s_add_u32 s60, s0, {sT0}
        s_addc_u32 s61, s1, 0
        s_load_dwordx2 s[{SX}:{SX+1}], s[60:61], 0
        s_load_dwordx2 s[{SWQ}:{SWQ+1}], s[60:61], 24
        s_load_dwordx2 s[{SK}:{SK+1}], s[60:61], 8
        s_load_dwordx2 s[{SV}:{SV+1}], s[60:61], 16
        s_load_dwordx2 s[{SWO}:{SWO+1}], s[60:61], 32
        s_load_dwordx2 s[{SOUT}:{SOUT+1}], s[0:1], 80
        s_load_dwordx2 s[{SDBG}:{SDBG+1}], s[0:1], 88
        s_load_dwordx2 s[{SWS}:{SWS+1}], s[0:1], 96""")
        if "spinto" in s.o: a("s_memrealtime s[98:99]")
        a(f"""v_lshrrev_b32 v1, 6, v0
        v_and_b32 v0, 63, v0
        v_readfirstlane_b32 {sW}, v1
        s_bfe_u32 {sG}, {sWG}, 0x10003
        s_lshr_b32 {sCI}, {sWG}, 4
        s_and_b32 {sCN}, {sCI}, 3
        s_lshr_b32 {sCI}, {sCI}, 2
        s_add_u32 {sROT}, {sCN}, {sCI}
        s_and_b32 {sROT}, {sROT}, 3
        s_and_b32 {sMB}, {sT2}, 1
        s_lshl_b32 {sMB}, {sMB}, 2
        s_add_u32 {sMB}, {sMB}, {sCN}
        s_bfe_u32 {sHS}, {sT2}, 0x10001
        s_lshl_b32 {sHS}, {sHS}, 2
        s_add_u32 {sHS}, {sHS}, {sCI}
        s_lshl_b32 {sPM}, {sP}, 3
        s_add_u32 {sPM}, {sPM}, {sMB}
        s_lshr_b32 {sTEAM}, {sW}, 2
        s_and_b32 {sW}, {sW}, 3
        s_lshl_b32 {sW1K}, {sW}, 10
        s_lshl_b32 {sFLG}, {sPM}, 8
        s_add_u32 {sFLG}, {sFLG}, {WS_F}
        s_bfe_u32 {sCHK}, {sWG}, 0x30004
        s_add_u32 {sCHK}, {sCHK}, 4""")
        if s.o.get("rnd", 1):
            a(f"""s_mul_i32 {sT3}, {sWG}, 0x9E3779B1
            s_lshr_b32 {sSTR}, {sT3}, 29
            s_lshl_b32 {sSTR}, {sSTR}, 14
            s_or_b32 {sSTR}, {sSTR}, 8192
            s_bfe_u32 {sXOR}, {sT3}, 0x40018
            s_lshl_b32 {sXOR}, {sXOR}, 13
            s_or_b32 {sXOR}, {sXOR}, 0x400000""")
        else:
            a(f"s_mov_b32 {sSTR}, 8192\ns_mov_b32 {sXOR}, {hex(0x400000 + s.o.get('xo', 0)*8192)}")
        for (b, size) in [(SX, 3145728), (SWQ, 8388608), (SWO, 8388608), (SK, 67108864), (SV, 67108864),
                          (SWS, WS_SIZE), (SOUT, 6291456), (SDBG, 256)]:
            a(f"s_mov_b32 s{b+2}, {size}\ns_mov_b32 s{b+3}, 0x20000")
        a(f"""v_lshrrev_b32 v1, 5, v0
        v_lshlrev_b32 v1, 6, v1
        v_bfe_u32 v2, v0, 2, 3
        v_and_b32 v3, 3, v0
        s_lshl_b32 {sT2}, {sW}, 3
        v_add_u32 v4, {sT2}, v2
        v_lshrrev_b32 v5, 2, v4
        v_sub_u32 v5, 0, v5
        v_and_b32 v5, 3, v5
        v_xor_b32 v5, v5, v3
        v_lshl_add_u32 v5, v5, 4, v1
        v_lshl_add_u32 v{vLX}, v4, 11, v5
        s_and_b32 {sT2}, {sW}, 1
        s_lshl_b32 {sT3}, {sT2}, 1
        v_xor_b32 v5, {sT3}, v3
        v_lshl_add_u32 v5, v5, 4, v1
        v_lshl_add_u32 v{vLWQ}, v4, 13, v5
        v_lshl_add_u32 v{vLWO}, v4, 11, v5
        v_lshlrev_b32 v5, 4, v0
        v_add_u32 v{vLO}, {sW1K}, v5
        v_xor_b32 v5, {sT2}, v3
        v_lshl_add_u32 v5, v5, 4, v1
        v_lshl_add_u32 v{vLK}, v4, 8, v5
        v_lshrrev_b32 v5, 2, v2
        v_lshlrev_b32 v5, 1, v5
        v_xor_b32 v5, v5, v3
        v_lshl_add_u32 v5, v5, 4, v1
        v_lshl_add_u32 v{vLV}, v4, 8, v5""")
        if s.stamps:
            for i in range(16): a(f"s_mov_b32 s{sSTAMP+i}, 0")
        if s.o.get("trace"):
            a(f"s_lshl_b32 s98, {sWG}, 1\ns_add_u32 s98, s98, {sTEAM}\ns_lshl_b32 s98, s98, 10\ns_add_u32 s98, s98, {WS_T + 0x100000}")
        a("s_waitcnt lgkmcnt(0)")
        a(f"""s_and_b32 {sHH4}, {sHS}, 4
        s_and_b32 {sCOL}, {sHS}, 3
        s_lshl_b32 {sCOL}, {sCOL}, 1
        s_lshr_b32 {sPX}, {sPM}, 2
        s_and_b32 {sT0}, {sPX}, {1 if s.o.get("px", 1) else 0}
        s_xor_b32 {sT0}, {sT0}, {sG}
        s_add_u32 {sCOL}, {sCOL}, {sT0}
        s_lshl_b32 {sPX}, {sPX}, 3
        s_and_b32 {sPX}, {sPX}, {31 if s.o.get("px", 1) else 0}
        s_lshl_b32 {sCOL}, {sCOL}, 8
        s_lshl_b32 {sT0}, {sHH4}, 5
        s_add_u32 {sCOL}, {sCOL}, {sT0}""")
        s.stamp()
        s.prio(True)
        a(f"""s_cmp_eq_u32 {sG}, 0
        s_cbranch_scc0 L_g2
        s_cmp_eq_u32 {sTEAM}, 0
        s_cbranch_scc1 L_g1t0
        s_branch L_g1t1""")
        a.lab("L_g2")
        a(f"s_cmp_eq_u32 {sTEAM}, 0\ns_cbranch_scc1 L_g2t0\ns_branch L_g2t1")

    def call(s, f, lr=LR1): s.a(f"s_call_b64 {lr}, {f}")
    def W(s, n):
        if s.o.get("trace", 0) > 1:
            s.trace(1); s.a(f"s_waitcnt vmcnt({n + 1 if n else 0})"); s.trace(2)
        else: s.a(f"s_waitcnt vmcnt({n})")
    def B(s): s.a("s_barrier")
    def head(s, dst, sel):
        s.a(f"s_lshl_b32 {dst}, {sG}, 3\ns_add_u32 {dst}, {dst}, {sHS}")
        if sel: s.a(f"s_add_u32 {dst}, {dst}, 16")
        s.a(f"s_xor_b32 {dst}, {dst}, {sPX}")
    def setQ(s, sel, start, first=False):
        s.head(sT0, 0 if s.o.get("fixwq") else sel)
        s.a(f"""s_lshl_b32 {sBB}, {sT0}, 8
        s_mul_i32 {sBA}, {sMB}, {192*2048}
        s_lshl_b32 {sROFF}, {sROT}, 1
        s_add_u32 {sROFF}, {sROFF}, {sG}
        s_lshl_b32 {sROFF}, {sROFF}, 1
        s_mov_b32 {sLI}, {start}
        s_mov_b32 {sLS}, {start*SLOT}""")
        if first and (s.o.get("warm") or s.o.get("sw")): s.a(f"s_mov_b32 {sROFF}, 0")
    def setO(s, start):
        s.a(f"""s_mul_i32 {sBA}, {sPM}, {32*49152}
        s_add_u32 {sBA}, {sBA}, {WS_O}
        s_lshl_b32 {sROFF}, {sROT}, 1
        s_lshl_b32 {sKST}, {sHH4}, 1
        s_mov_b32 {sLI}, {start}
        s_mov_b32 {sLS}, {(start % 4)*SLOT}""")
    def setA(s, sel, start):
        s.head(sT0, sel)
        s.a(f"""s_lshl_b32 {sT1}, {sMB}, 6
        s_add_u32 {sT0}, {sT0}, {sT1}
        s_lshl_b32 {sKB}, {sT0}, 17
        s_lshr_b32 {sTK}, {sWG}, 4
        s_lshl_b32 {sTK}, {sTK}, 13
        s_mov_b32 {sTV}, {sTK}
        s_mov_b32 {sLI}, {start}
        s_mov_b32 {sLS}, {(start % 4)*SLOT}""")
        if start:
            s.a(f"""s_mul_i32 {sT0}, {sSTR}, {start+1}
            s_add_u32 {sTK}, {sTK}, {sT0}
            s_and_b32 {sTK}, {sTK}, 0x1ffff
            s_mul_i32 {sT0}, {sSTR}, {start-1}
            s_add_u32 {sTV}, {sTV}, {sT0}
            s_and_b32 {sTV}, {sTV}, 0x1ffff""")
    def iss_end(s):
        s.a(f"""s_add_u32 {sLS}, {sLS}, {SLOT}
        s_cmp_eq_u32 {sLS}, {4*SLOT}
        s_cselect_b32 {sLS}, 0, {sLS}
        s_add_u32 {sLI}, {sLI}, 1
        s_setpc_b64 {LR1}""")
    def loader_funcs(s):
        a = s.a
        def gemm_iss(name, kind):
            a.lab(name)
            s.trace()
            if kind == "Q":
                a(f"""s_add_u32 {sT0}, {sLI}, {sROFF}
                s_and_b32 {sT0}, {sT0}, 15
                s_lshl_b32 {sA}, {sT0}, 7
                s_add_u32 {sA}, {sA}, {sBA}
                s_lshl_b32 {sB0}, {sT0}, 19
                s_add_u32 {sB0}, {sB0}, {sBB}""")
                ja, jb, ra, rb, va, vb, fa, fb = 65536, 32*8192, SX, SWQ, vLX, vLWQ, s.o.get("fx", ""), s.o.get("fwq", "")
            else:
                a(f"s_add_u32 {sT0}, {sLI}, {sROFF}\ns_and_b32 {sT0}, {sT0}, 7")
                if kind == "O": a(f"s_and_b32 {sT1}, {sLI}, 0x78\ns_lshl_b32 {sT1}, {sT1}, 1\ns_add_u32 {sT1}, {sT1}, {sKST}")
                else: a(f"s_and_b32 {sT1}, {sLI}, 8\ns_xor_b32 {sT1}, {sT1}, {sKST}\ns_add_u32 {sT1}, {sT1}, 48")
                a(f"""s_add_u32 {sT0}, {sT0}, {sT1}
                s_and_b32 {sT1}, {sT0}, {1 if s.o.get("fixo") else 63}
                s_mul_i32 {sA}, {sT1}, 24576
                s_add_u32 {sA}, {sA}, {sBA}
                s_and_b32 {sT0}, {sT0}, {1 if s.o.get("fixwo") else 63}
                s_lshl_b32 {sB0}, {sT0}, 17
                s_lshl_b32 {sT1}, {sPX}, 18
                s_xor_b32 {sB0}, {sB0}, {sT1}
                s_add_u32 {sB0}, {sB0}, {sCOL}""")
                ja, jb, ra, rb, va, vb, fa, fb = 4096, 32*2048, SWS, SWO, vLO, vLWO, "sc1", s.o.get("fwo", "")
            a(f"s_add_u32 {sM0}, {sLS}, {sW1K}")
            for j in range(6):
                a(f"s_add_u32 m0, {sM0}, {j*4096}")
                a(f"s_add_u32 {sA}, {sA}, {ja}" if j else f"s_xor_b32 {sB1}, {sB0}, 128")
                a(f"buffer_load_dwordx4 v{va}, {srd(ra)}, {sA} offen {fa} lds")
            if kind == "T":
                for oo in range(2):
                    a(f"s_add_u32 m0, {sM0}, {24576 + oo*4096}")
                    a(f"s_add_u32 {sB0}, {sB0}, {jb}" if oo else "s_nop 0")
                    a(f"buffer_load_dwordx4 v{vb}, {srd(rb)}, {sB0} offen {fb} lds")
            else:
                a(f"s_add_u32 {sM0}, {sM0}, {sW1K}")
                for oo in range(2):
                    for hf in range(2):
                        r = sB1 if hf else sB0
                        a(f"s_add_u32 m0, {sM0}, {24576 + oo*8192 + hf*1024}")
                        a(f"s_add_u32 {r}, {r}, {jb}" if oo else "s_nop 0")
                        a(f"buffer_load_dwordx4 v{vb}, {srd(rb)}, {r} offen {fb} lds")
            s.iss_end()
        gemm_iss("F_IQ", "Q"); gemm_iss("F_IO", "O"); gemm_iss("F_IT", "T")
        fk = s.o.get("fk", "nt")
        def half(kind, pos):
            sr, vo, t = (SK, vLK, sTK) if kind == "K" else (SV, vLV, sTV)
            a(f"s_add_u32 {sA}, {sKB}, {t}\ns_xor_b32 {sB0}, {sA}, {sXOR}")
            fill = [f"s_add_u32 {t}, {t}, {sSTR}", f"s_and_b32 {t}, {t}, 0x1ffff", "s_nop 0", "s_nop 0"]
            for it in range(2):
                for hf in range(2):
                    a(f"s_add_u32 m0, {sM0}, {pos*16384 + it*8192 + hf*(1024-128)}\n{fill[it*2+hf]}")
                    a(f"buffer_load_dwordx4 v{vo}, {srd(sr)}, {sA if it == 0 else sB0} offen offset:{hf*128} {fk} lds")
        for name, k0, k1 in (("F_IA0", "K", "K"), ("F_IAM", "V", "K"), ("F_IAL", "V", "V")):
            a.lab(name)
            s.trace()
            a(f"s_add_u32 {sM0}, {sLS}, {sW1K}\ns_add_u32 {sM0}, {sM0}, {sW1K}")
            half(k0, 0); half(k1, 1)
            s.iss_end()
        a.lab("F_SKIP")
        a(f"""s_add_u32 {sTK}, {sTK}, {sSTR}
        s_and_b32 {sTK}, {sTK}, 0x1ffff
        s_add_u32 {sTV}, {sTV}, {sSTR}
        s_and_b32 {sTV}, {sTV}, 0x1ffff""")
        s.iss_end()
        a.lab("F_TOUCH")
        a(f"""s_cmp_ge_u32 {sW}, 2
        s_cbranch_scc1 L_tw
        s_lshl_b32 {sT0}, {sBIT}, 7
        s_add_u32 {sT0}, {sT0}, {sCNT}
        buffer_load_dword v{vT}, v{vT+1}, {srd(SX)}, {sT0} offen
        s_setpc_b64 {LR1}""")
        a.lab("L_tw")
        a(f"""s_lshl_b32 {sT0}, {sBIT}, 19
        s_add_u32 {sT0}, {sT0}, {sCNT}
        buffer_load_dword v{vT}, v{vT+1}, {srd(SWQ)}, {sT0} offen
        s_setpc_b64 {LR1}""")
        a.lab("F_PF")
        fp = s.o.get("fpf", "")
        a(f"""s_lshl_b32 {sT0}, {sG}, 3
        s_add_u32 {sT0}, {sT0}, {sHS}
        s_add_u32 {sT0}, {sT0}, {sBIT}
        s_xor_b32 {sT0}, {sT0}, {sPX}
        s_lshl_b32 {sT1}, {sMB}, 6
        s_add_u32 {sT0}, {sT0}, {sT1}
        s_lshl_b32 {sT0}, {sT0}, 17
        s_and_b32 {sT1}, {sW}, 2
        s_add_u32 {sT1}, {sT1}, {sNEED}
        s_sub_u32 {sT1}, {sT1}, 1
        s_mul_i32 {sT1}, {sT1}, {sSTR}
        s_lshr_b32 {sA}, {sWG}, 4
        s_lshl_b32 {sA}, {sA}, 13
        s_add_u32 {sT1}, {sT1}, {sA}
        s_and_b32 {sT1}, {sT1}, 0x1ffff
        s_add_u32 {sT0}, {sT0}, {sT1}
        s_and_b32 {sT1}, {sW}, 1
        s_cselect_b32 {sT1}, {sXOR}, 0
        s_xor_b32 {sT0}, {sT0}, {sT1}
        v_lshlrev_b32 v{vT+1}, 7, v0
        s_cmp_ge_u32 {sW}, 2
        s_cbranch_scc1 L_pfk
        buffer_load_dword v{vT}, v{vT+1}, {srd(SV)}, {sT0} offen {fp}
        s_setpc_b64 {LR1}""")
        a.lab("L_pfk")
        a(f"buffer_load_dword v{vT}, v{vT+1}, {srd(SK)}, {sT0} offen {fp}\ns_setpc_b64 {LR1}")
        a.lab("F_FPRE")
        a(f"""s_cmp_lg_u32 {sW}, 0
        s_cbranch_scc1 F_RET1
        v_and_b32 v{vT+1}, 15, v0
        v_lshlrev_b32 v{vT+1}, 2, v{vT+1}
        buffer_load_dword v{vT}, v{vT+1}, {srd(SWS)}, {sFLG} offen sc1""")
        a.lab("F_RET1")
        a(f"s_setpc_b64 {LR1}")
        a.lab("F_FCHK")
        a(f"s_cmp_lg_u32 {sW}, 0\ns_cbranch_scc1 F_RET1\ns_mov_b32 {sCNT}, 0x40000")
        a.lab("L_fchk")
        a(f"""v_and_b32 v{vT+2}, {sBIT}, v{vT}
        v_cmp_ne_u32 vcc, 0, v{vT+2}
        s_nop 1
        s_and_b32 {sT0}, vcc_lo, {sNEED}
        s_cmp_eq_u32 {sT0}, {sNEED}
        s_cbranch_scc1 F_RET1
        s_sub_u32 {sCNT}, {sCNT}, 1
        s_cmp_eq_u32 {sCNT}, 0
        s_cbranch_scc1 F_RET1
        s_sleep {s.o.get('slp', 2)}
        buffer_load_dword v{vT}, v{vT+1}, {srd(SWS)}, {sFLG} offen sc1
        s_waitcnt vmcnt(0)
        s_branch L_fchk""")
        a.lab("F_SIG")
        a(f"""s_cmp_lg_u32 {sW}, 0
        s_cbranch_scc1 F_RET1
        s_lshl_b32 {sT0}, {sG}, 3
        s_add_u32 {sT0}, {sT0}, {sHS}
        s_lshl_b32 {sT0}, {sT0}, 2
        v_mov_b32 v{vT+3}, {sT0}
        v_mov_b32 v{vT+2}, {sSIG}
        s_mov_b64 exec, 1
        buffer_store_dword v{vT+2}, v{vT+3}, {srd(SWS)}, {sFLG} offen sc1
        s_mov_b64 exec, -1
        s_setpc_b64 {LR1}""")
    def need_block(s, b):
        if b == "partner":
            s.a(f"""s_mov_b32 {sBIT}, 4
            s_lshl_b32 {sT0}, {sG}, 3
            s_xor_b32 {sT1}, {sHS}, 4
            s_add_u32 {sT0}, {sT0}, {sT1}
            s_lshl_b32 {sNEED}, 1, {sT0}""")
            return
        r, remote = b
        s.a(f"s_mov_b32 {sBIT}, {1 << (r >> 1)}")
        if remote: s.a(f"s_xor_b32 {sT0}, {sHH4}, 4\ns_lshl_b32 {sNEED}, {hex(0xF << ((r & 1)*8))}, {sT0}")
        else: s.a(f"s_lshl_b32 {sNEED}, {hex(0xF << ((r & 1)*8))}, {sHH4}")
    SZ = {"F_IQ": 10, "F_IO": 10, "F_IT": 8, "F_IA0": 8, "F_IAM": 8, "F_IAL": 8}
    def lstart(s, nxt):
        s.vq = []; s.nu = nxt
    def room(s, n):
        if sum(k for _, k in s.vq) + n > 58:
            keep = []; tot = 0
            for e in reversed(s.vq):
                if tot + e[1] + n > 58: break
                keep.insert(0, e); tot += e[1]
            s.a(f"s_waitcnt vmcnt({tot})"); s.vq = keep
    def I(s, f):
        s.room(s.SZ[f]); s.call(f); s.vq.append((s.nu, s.SZ[f])); s.nu += 1
    def extra(s, n): s.vq.append((None, n))
    def wcount(s, u):
        idx = [i for i, (t, n) in enumerate(s.vq) if t == u]
        if not idx: return None
        return idx[0], sum(n for (t, n) in s.vq[idx[0] + 1:])
    def WB(s, u=None, mid=None):
        if u is None: u = s.nu - 3
        r = s.wcount(u)
        if r is not None:
            s.W(min(r[1], 63)); s.vq = s.vq[r[0] + 1:]
        if mid: mid()
        s.B()
    def unit(s, f): s.I(f); s.WB()
    def lrun(s, f, cur, end):
        n = s.SZ[f]
        while cur < end and s.vq != [(s.nu - 2, n), (s.nu - 1, n)] and not (len(s.vq) == 2 and s.vq[1] == (s.nu - 1, n) and s.vq[0][0] == s.nu - 2):
            s.unit(f); cur += 1
        if end - cur == 1: s.unit(f)
        elif cur < end:
            a = s.a; L = a.new("L_ll"); a.lab(L)
            s.call(f); s.W(2 * n); s.B()
            a(f"s_cmp_lt_u32 {sLI}, {end}\ns_cbranch_scc1 {L}")
            s.nu += end - cur; s.vq = [(s.nu - 2, n), (s.nu - 1, n)]
    def chk2(s, f1, f2, b):
        s.call("F_FPRE"); s.unit(f1); s.I(f2)
        def mid(): s.need_block(b); s.call("F_FCHK")
        assert len(s.vq) == 3 and s.vq[0][0] == s.nu - 3, s.vq
        s.WB(mid=mid)
    def ldrain(s):
        s.WB(s.nu - 2); s.WB(s.nu - 1)
    def init_flags(s):
        a = s.a; L = a.new("L_if")
        a(f"s_mov_b32 {sSIG}, 0"); s.call("F_SIG")
        a(f"""s_cmp_lg_u32 {sW}, 0
        s_cbranch_scc1 {L}
        s_waitcnt vmcnt(0)
        s_lshl_b32 {sT0}, {sPM}, 4
        v_mov_b32 v{vT+3}, {sT0}
        v_mov_b32 v{vT+2}, 1
        s_mov_b64 exec, 1
        buffer_atomic_add v{vT+2}, v{vT+3}, {srd(SDBG)}, 0 offen sc1
        s_mov_b64 exec, -1""")
        a.lab(L)
    def att_loader_first(s, cur, end, f="F_IAM"):
        a = s.a; L = a.new("L_ll"); X = a.new("L_lx"); R = a.new("L_lr"); S = a.new("L_ls"); D = a.new("L_ld")
        n = s.SZ[f]
        assert s.vq == [(s.nu - 2, n), (s.nu - 1, n)] and cur <= 4 and end >= 13, s.vq
        a.lab(L)
        a(f"s_cmp_eq_u32 {sLI}, {sCHK}\ns_cbranch_scc1 {X}")
        s.call(f); s.W(2 * n)
        a.lab(R)
        s.B()
        a(f"s_cmp_lt_u32 {sLI}, {end}\ns_cbranch_scc1 {L}\ns_branch {D}")
        a.lab(X)
        a(f"s_lshl_b32 {sT2}, {sPM}, 4\nv_mov_b32 v{vT+1}, {sT2}\ns_mov_b32 {sCNT}, 0x40000\ns_cmp_lg_u32 {sW}, 0\ns_cbranch_scc1 {S}")
        a(f"buffer_load_dword v{vT}, v{vT+1}, {srd(SDBG)}, 0 offen sc1")
        a.lab(S)
        s.call(f); s.W(2 * n); s.B()
        s.call(f); s.W(2 * n)
        a(f"s_cmp_lg_u32 {sW}, 0\ns_cbranch_scc1 {R}")
        P = a.new("L_lp"); a.lab(P)
        a(f"""v_readfirstlane_b32 {sT0}, v{vT}
        s_cmp_ge_u32 {sT0}, 16
        s_cbranch_scc1 {R}
        s_sub_u32 {sCNT}, {sCNT}, 1
        s_cmp_eq_u32 {sCNT}, 0
        s_cbranch_scc1 {R}
        s_sleep 8
        buffer_load_dword v{vT}, v{vT+1}, {srd(SDBG)}, 0 offen sc1
        s_waitcnt vmcnt(0)
        s_branch {P}""")
        a.lab(D)
        s.nu += end - cur; s.vq = [(s.nu - 2, n), (s.nu - 1, n)]

    RPR = list(range(64, 208, 4)) + list(range(8, 56, 4))
    def preload_set(s):
        s.head(sT0, 0)
        s.a(f"""s_lshl_b32 {sT1}, {sMB}, 6
        s_add_u32 {sT0}, {sT0}, {sT1}
        s_lshl_b32 {sKB}, {sT0}, 17
        s_lshr_b32 {sTK}, {sWG}, 4
        s_lshl_b32 {sTK}, {sTK}, 13""")
    def preload(s, k, u):
        a = s.a; fk = s.o.get("fk", "nt")
        for pos, (sr, vo, d) in enumerate(((SV, vLV, u - 1), (SK, vLK, u + 1) if u < 15 else (SV, vLV, 15))):
            a(f"""s_mul_i32 {sT0}, {sSTR}, {d}
            s_add_u32 {sT0}, {sT0}, {sTK}
            s_and_b32 {sT0}, {sT0}, 0x1ffff
            s_add_u32 {sA}, {sKB}, {sT0}
            s_xor_b32 {sB0}, {sA}, {sXOR}""")
            for it in range(2):
                for hf in range(2):
                    r = s.RPR[k*8 + pos*4 + it*2 + hf]
                    a(f"buffer_load_dwordx4 {vr(r)}, v{vo}, {srd(sr)}, {sA if it == 0 else sB0} offen offset:{hf*128} {fk}")
        s.extra(8)
    def dump(s, k, part):
        a = s.a; n1 = s.o.get("dsplit", 5)
        if part == 0:
            s.trace()
            a(f"s_add_u32 {sM0}, {sLS}, {sW1K}\nv_add_u32 v{vA0}, {sM0}, v{vLO}")
        for j in (range(n1) if part == 0 else range(n1, 8)):
            a(f"ds_write_b128 v{vA0}, {vr(s.RPR[k*8 + j])} offset:{(j >> 2)*16384 + ((j >> 1) & 1)*8192 + (j & 1)*1024}")
        if part == 0: s.call("F_SKIP"); s.nu += 1; s.pendd = k
        else: s.pendd = None; s.pendw = True
    pendd = None; pendw = False
    def AU(s, u, units, f=None):
        if s.pendw: s.a("s_waitcnt lgkmcnt(0)"); s.pendw = False
        if u in units:
            if s.pendd is not None: s.dump(s.pendd, 1)
            s.dump(units.index(u), 0)
        else:
            s.I(f or ("F_IAM" if u < 15 else "F_IAL"))
            if s.pendd is not None: s.dump(s.pendd, 1)
    def att_mixed(s, cur, end, units):
        for u in range(cur, end):
            s.AU(u, units); s.WB()
        assert s.pendd is None
        if s.pendw: s.a("s_waitcnt lgkmcnt(0)"); s.pendw = False

    def xoff(s, dst, tmp, tmp2, perm):
        a = s.a
        a(f"""v_bfe_u32 v{dst}, v0, 3, 1
        s_mul_i32 {sT0}, {sW}, 6
        v_add_u32 v{dst}, {sT0}, v{dst}
        v_lshlrev_b32 v{dst}, 10, v{dst}
        v_and_b32 v{tmp}, 7, v0
        v_lshl_add_u32 v{dst}, v{tmp}, 6, v{dst}""")
        if perm: a(f"v_lshrrev_b32 v{tmp2}, 5, v0\nv_bfe_u32 v{tmp}, v0, 4, 1\nv_lshl_or_b32 v{tmp2}, v{tmp}, 1, v{tmp2}")
        else: a(f"v_lshrrev_b32 v{tmp2}, 4, v0")
        a(f"""v_lshrrev_b32 v{tmp}, 2, v0
        v_sub_u32 v{tmp}, 0, v{tmp}
        v_and_b32 v{tmp}, 3, v{tmp}
        v_xor_b32 v{tmp}, v{tmp}, v{tmp2}
        v_lshl_add_u32 v{dst}, v{tmp}, 4, v{dst}""")
    def gemm_addr_func(s, name, tail):
        a = s.a; a.lab(name)
        s.xoff(vA0, vM, vM + 1, False)
        sh = 10 if tail else 11
        a(f"""v_lshlrev_b32 v{vA1}, {sh}, v{vM+1}
        v_bfe_u32 v{vM}, v0, 2, 2
        v_lshl_add_u32 v{vA1}, v{vM}, 6, v{vA1}
        v_and_b32 v{vM}, 1, v{vM+1}
        v_lshl_add_u32 v{vA1}, v{vM}, 5, v{vA1}
        v_and_b32 v{vM}, 3, v0
        v_lshl_add_u32 v{vA1}, v{vM}, 3, v{vA1}
        v_add_u32 v{vA1}, 24576, v{vA1}
        v_xor_b32 v{vA2}, 32, v{vA1}
        s_mov_b32 {sCS}, 0
        s_setpc_b64 {LR1}""")
    def adv_scalar(s):
        return [f"s_add_u32 {sCS}, {sCS}, 1", f"s_and_b32 {sCS}, {sCS}, 3", f"s_cselect_b32 {sDL}, {sT3}, {sT2}"]
    def adv_consts(s): s.a(f"s_mov_b32 {sT3}, {SLOT}\ns_mov_b32 {sT2}, {-3*SLOT & 0xffffffff}")
    def adv_vec(s): return [f"v_add_u32 v{r}, {sDL}, v{r}" for r in (vA0, vA1, vA2)]

    def gemm_func(s, name, tail, hook):
        a = s.a; q = LQ(a)
        NT = 4 if tail else 8; NF = 2 * NT
        R = 8; LA = 4 if tail else s.o.get("gla", 5)
        vX = vS
        wreg = [88, 92, 96, 100, 104, 108, 36, 40]
        kso = 4096 if tail else 8192
        def rdW(f, sec):
            ks, nt = (f % NF) // NT, f % NT
            r = wreg[f % R]; ad = vA1 if nt % 2 == 0 else vA2
            return lambda: q.rd(f"ds_read_b64_tr_b16 {vr(r + 2*sec, 2)}, v{ad} offset:{ks*kso + (nt>>1)*512 + sec*256}", ("W", f % NF))
        def rdX(ks, mt):
            return lambda: q.rd(f"ds_read_b128 {vr(vX + ks*12 + mt*4)}, v{vA0} offset:{mt*2048 + ks*512}", ("X", ks))
        def ins(t): return lambda: a(t)
        def grp(f, fill, zero=False):
            ks, nt = f // NT, f % NT
            q.need(("W", f), ("X", ks))
            for mt in range(3):
                a(mfma(acc(nt, mt), wreg[f % R], vX + ks*12 + mt*4, "0" if (zero and ks == 0) else acc(nt, mt)))
                for x in fill[mt]: x()
        cut = NF - LA + 1
        def part1(zero):
            sc = s.adv_scalar() + [f"s_add_u32 {sCI}, {sCI}, 1"]
            for f in range(cut):
                fill = [[rdW(f + LA, 0)], [rdW(f + LA, 1)], []]
                if f < 3: fill[2].append(rdX(1, f))
                if tail:
                    if f < 2: fill[0].append(ins(sc[2*f])); fill[1].append(ins(sc[2*f+1]))
                elif 3 <= f < 7: fill[2].append(ins(sc[f - 3]))
                if f == cut - 2: fill = [[rdW(f + LA, 0), rdW(f + LA, 1)], [], []]
                if f == cut - 1:
                    av = s.adv_vec()
                    def drain(): a("s_waitcnt lgkmcnt(0)"); q.q = []
                    fill = [[ins(av[0]), ins(av[1])], [ins(av[2]), ins(f"s_cmp_lg_u32 {sCI}, {sSTOP}")], [drain]]
                grp(f, fill, zero)
        def part2(reads):
            rl = [rdX(0, mt) for mt in range(3)] + [rdW(f, sec) for f in range(LA) for sec in range(2)]
            ngap = 3 * (NF - cut); extra = len(rl) - ngap
            it = iter(rl); gi = 0
            for f in range(cut, NF):
                fill = [[], [], []]
                if reads:
                    for mt in range(3):
                        fill[mt] = [next(it)] + ([next(it)] if gi < extra else []); gi += 1
                grp(f, fill)
        L = a.new("L_gl"); Bk = a.new("L_gb"); ST = a.new("L_gs"); F = a.new("L_gf")
        a.lab(name)
        s.stamp()
        for mt in range(3): rdX(0, mt)()
        for f in range(LA): rdW(f, 0)(); rdW(f, 1)()
        s.adv_consts()
        a(f"s_mov_b32 {sCI}, 0")
        q0 = list(q.q)
        if tail:
            a(f"s_branch {name}_P1")
            n0 = len(a.l); part1(False); del a.l[n0:]
            q1 = list(q.q)
        else:
            part1(True)
            q1 = list(q.q)
            a(f"s_cbranch_scc0 {ST}")
        a.l.append(".p2align 6") if s.o.get("al") else None
        a.lab(L)
        a("s_barrier")
        a.lab(Bk)
        part2(True)
        assert q.q == q0, (q.q, q0)
        a.lab(name + "_P1")
        part1(False)
        assert q.q == q1
        a(f"s_cbranch_scc1 {L}")
        a.lab(ST)
        a(f"s_cmp_eq_u32 {sCI}, {sCN}\ns_cbranch_scc1 {F}")
        hook()
        a(f"s_mov_b32 {sSTOP}, {sSTOP2}\ns_mov_b32 {sSTOP2}, {sCN}\ns_branch {Bk}")
        if not tail:
            a.lab(name + "C")
            s.stamp()
            sv = q.q; q.q = []
            for mt in range(3): rdX(0, mt)()
            for f in range(LA): rdW(f, 0)(); rdW(f, 1)()
            q.q = sv
            s.adv_consts()
            a(f"s_mov_b32 {sCI}, 0\ns_branch {name}_P1")
        a.lab(F)
        part2(False)
        a("s_nop 6")
        s.stamp()
        a(f"s_setpc_b64 {LR2}")

    def pack_mt(s, mt, npair, scale, dst):
        a = s.a
        for pr in range(npair):
            d = dst(mt, pr); x = acc(2 * pr, mt); y = acc(2 * pr + 1, mt)
            if scale is not None:
                for b in (x, x + 2, y, y + 2): a(f"v_pk_mul_f32 {vr(b, 2)}, {vr(b, 2)}, {scale}")
            a(f"v_cvt_pk_bf16_f32 v{d}, v{x}, v{x+1}\nv_cvt_pk_bf16_f32 v{d+2}, v{y}, v{y+1}")
            a(f"v_cvt_pk_bf16_f32 v{d+1}, v{x+2}, v{x+3}\nv_cvt_pk_bf16_f32 v{d+3}, v{y+2}, v{y+3}")
            if pr:
                e = dst(mt, pr - 1); a(f"v_permlane16_swap_b32 v{e}, v{e+2}\nv_permlane16_swap_b32 v{e+1}, v{e+3}")
        e = dst(mt, npair - 1)
        a(("s_nop 0\n" if npair > 1 else "s_nop 1\n") + f"v_permlane16_swap_b32 v{e}, v{e+2}\nv_permlane16_swap_b32 v{e+1}, v{e+3}")

    def misc_funcs(s):
        a = s.a
        a.lab("F_PACKQ")
        a(f"v_mov_b32 v{vM}, {f32(QSCALE)}\nv_mov_b32 v{vM+1}, {f32(QSCALE)}")
        for mt in range(3): s.pack_mt(mt, 4, vr(vM, 2), qreg)
        a(f"s_setpc_b64 {LR1}")
        for mt in range(3):
            a.lab(f"F_EPI{mt}")
            if mt == 0:
                s.xoff(vA0, vM, vM + 1, True)
                a(f"""s_lshl_b32 {sT0}, {sSEL}, 1
                s_add_u32 {sT0}, {sT0}, {sG}
                s_lshl_b32 {sT0}, {sT0}, 3
                s_add_u32 {sT0}, {sT0}, {sHS}
                s_lshl_b32 {sT1}, {sPM}, 5
                s_add_u32 {sT0}, {sT0}, {sT1}
                s_mul_i32 {sCS}, {sT0}, 49152
                s_add_u32 {sCS}, {sCS}, {WS_O + s.o.get("oredir", 0)}""")
                if s.o.get("osmall"): a(f"s_mul_i32 {sCS}, {sWG}, 49152\ns_add_u32 {sCS}, {sCS}, 0x6000000")
            a(f"v_rcp_f32 v{vM}, v{vL+mt*4}\ns_add_u32 {sDL}, {sCS}, 24576\nv_mov_b32 v{vM+1}, v{vM}")
            s.pack_mt(mt, 4, vr(vM, 2), qreg)
            for ks in range(4):
                a(f"buffer_store_dwordx4 {vr(qreg(mt, ks))}, v{vA0}, {srd(SWS)}, {sCS if ks < 2 else sDL} offen offset:{(ks & 1)*512} {s.o.get('fo', 'sc1')}")
            a(f"s_add_u32 {sCS}, {sCS}, 2048\ns_setpc_b64 {LR1}")
        a.lab("F_ASET")
        a(f"""v_lshrrev_b32 v{vM+2}, 4, v0
        s_lshr_b32 {sT0}, {sW}, 1
        s_lshl_b32 {sT0}, {sT0}, 13
        v_bfe_u32 v{vM}, v0, 3, 1
        v_lshrrev_b32 v{vM+1}, 1, v{vM+2}
        v_and_b32 v{vM+3}, 1, v{vM+2}
        v_lshl_or_b32 v{vA0}, v{vM+3}, 1, v{vM+1}
        v_xor_b32 v{vA0}, v{vA0}, v{vM}
        v_lshlrev_b32 v{vA0}, 4, v{vA0}
        v_lshl_add_u32 v{vA0}, v{vM}, 11, v{vA0}
        v_and_b32 v{vM}, 7, v0
        v_lshl_add_u32 v{vA0}, v{vM}, 6, v{vA0}
        v_add_u32 v{vA0}, {sT0}, v{vA0}
        v_lshlrev_b32 v{vA1}, 11, v{vM+1}
        v_bfe_u32 v{vM}, v0, 2, 3
        v_lshl_add_u32 v{vA1}, v{vM}, 6, v{vA1}
        v_lshl_add_u32 v{vA1}, v{vM+3}, 5, v{vA1}
        v_and_b32 v{vM}, 3, v0
        v_lshl_add_u32 v{vA1}, v{vM}, 3, v{vA1}
        v_add_u32 v{vA1}, {sT0}, v{vA1}
        v_xor_b32 v{vA2}, 32, v{vA1}
        s_mov_b32 {sCS}, 0""")
        for r in range(4): a(f"v_mov_b32 v{vONES+r}, 0x3f803f80")
        a(f"s_setpc_b64 {LR1}")

    def pstore(s, i0, i1):
        a = s.a
        if i0 == 0:
            a(f"""s_mul_i32 {sCS}, {sWG}, 49152
            s_mul_i32 {sT1}, {sW}, 12288
            s_add_u32 {sCS}, {sCS}, {sT1}
            s_add_u32 {sCS}, {sCS}, {WS_P}
            v_lshlrev_b32 v{vA0}, 4, v0""")
        for i in range(i0, i1):
            if i % 4 == 0 and i: a(f"s_add_u32 {sCS}, {sCS}, 4096")
            a(f"buffer_store_dwordx4 {vr(vACC + 48 + 4*i)}, v{vA0}, {srd(SWS)}, {sCS} offen offset:{(i % 4)*1024} sc1")

    def att_func(s):
        a = s.a; q = LQ(a)
        def S(par, qt, kt=0): return vS + par * 24 + qt * 8 + kt * 4
        ring = lambda f: vRING + (f % 4) * 4
        def rds(f, kb=16384, vb=0):
            f %= 16
            if f < 8:
                return [lambda: q.rd(f"ds_read_b128 {vr(ring(f))}, v{vA0} offset:{kb + (f >> 2)*4096 + (f & 3)*512}", f)]
            dt = f - 8; ad = vA1 if dt % 2 == 0 else vA2
            return [lambda sec=sec: q.rd(f"ds_read_b64_tr_b16 {vr(ring(f) + 2*sec, 2)}, v{ad} offset:{vb + sec*4096 + (dt >> 1)*512}", f) for sec in range(2)]
        def ins(t): return lambda: a(t)
        def qk(par, f, c0, fill):
            kt, ks = f >> 2, f & 3
            q.need(f)
            for qt in range(3):
                d = S(par, qt, kt)
                a(mfma(d, ring(f), qreg(qt, ks), (c0(qt) if ks == 0 else d)))
                for x in fill[qt]: x()
        def rowmax(par, qt, dst, tmp):
            b = S(par, qt)
            a(f"v_max3_f32 v{dst}, v{b}, v{b+1}, v{b+2}\nv_max3_f32 v{dst}, v{dst}, v{b+3}, v{b+4}\nv_max3_f32 v{dst}, v{dst}, v{b+5}, v{b+6}\nv_max_f32 v{dst}, v{dst}, v{b+7}")
            a(f"v_mov_b32 v{tmp}, v{dst}\ns_nop 1\nv_permlane16_swap_b32 v{dst}, v{tmp}\nv_max_f32 v{dst}, v{dst}, v{tmp}")
            a(f"v_mov_b32 v{tmp}, v{dst}\ns_nop 1\nv_permlane32_swap_b32 v{dst}, v{tmp}\nv_max_f32 v{dst}, v{dst}, v{tmp}")
        a.lab("F_ATT")
        s.stamp()
        for f in range(3):
            for x in rds(f, kb=0): x()
        s.adv_consts()
        zero = [f"v_pk_mov_b32 {vr(r, 2)}, 0, 0" for r in list(range(vL, vL + 12, 2)) + list(range(vACC, vACC + 96, 2))]
        for z in zero[:14]: a(z)
        zi = iter(zero[14:])
        for f in range(8):
            r = rds(f + 3, kb=0) if f + 3 < 8 else rds(f + 3 - 8)
            if f + 3 >= 8:
                pass
            fill = [r + [ins(next(zi))], [ins(next(zi)), ins(next(zi))], [ins(next(zi)), ins(next(zi))]]
            qk(0, f, lambda qt: "0", fill)
        assert next(zi, None) is None
        a("s_nop 5")
        for qt in range(3):
            rowmax(0, qt, vM + qt, vM + 4)
            for r in range(8): a(f"v_sub_f32 v{S(0,qt)+r}, v{S(0,qt)+r}, v{vM+qt}")
            for r in range(4): a(f"v_sub_f32 v{vCI+qt*4+r}, 0, v{vM+qt}")
        a(f"s_mov_b32 {sCI}, 0")
        q0 = list(q.q)
        def ex(par, i): return lambda: a(f"v_exp_f32 v{vS+par*24+i}, v{vS+par*24+i}")
        def cv(par, pr):
            qt, k = pr // 4, pr % 4; b = S(par, qt)
            return lambda: a(f"v_cvt_pk_bf16_f32 v{b+k}, v{b+2*k}, v{b+2*k+1}")
        def pv(par, f, fill):
            q.need(f)
            for qt in range(3):
                a(mfma(acc(f - 8, qt), ring(f), S(par, qt), acc(f - 8, qt)))
                for x in fill[qt]: x()
        def ones(par, qt): a(mfma(vL + qt*4, vONES, S(par, qt), vL + qt*4))
        rare = []
        def step(par):
            nx = par ^ 1
            av = s.adv_vec()
            for f in range(8):
                fill = []
                r = [[y] for y in rds(f + 3)]
                if f == 5: r = []
                if f == 6: r = [rds(8), [rds(9)[0]], [rds(9)[1]]]
                def drain(): a(f"s_waitcnt vmcnt({8 if par == 0 else 0}) lgkmcnt(0)"); q.q = []
                for qt in range(3):
                    i = f * 3 + qt; x = []
                    if qt < len(r): x += r[qt]
                    x.append(ex(par, i))
                    if i >= 2 and i % 2 == 0: x.append(cv(par, i // 2 - 1))
                    if f == 5: x.append(ins(av[qt]))
                    if f == 5 and qt == 2: x += [drain, ins("s_barrier")]
                    fill.append(x)
                qk(nx, f, lambda qt: vCI + qt*4, fill)
            ones(par, 0); cv(par, 11)(); ones(par, 1); a("s_nop 0"); ones(par, 2)
            regs = [S(nx, qt, kt) + r for kt in range(2) for qt in range(3) for r in range(4)]
            m0_, m1_ = vM, vM + 1
            mx = [f"v_max3_f32 v{m0_}, v{regs[0]}, v{regs[1]}, v{regs[2]}", f"v_max3_f32 v{m1_}, v{regs[3]}, v{regs[4]}, v{regs[5]}"]
            rest = regs[6:]
            for i in range(0, len(rest), 2):
                m = m0_ if (i // 2) % 2 == 0 else m1_
                mx.append(f"v_max3_f32 v{m}, v{m}, v{rest[i]}, v{rest[i+1]}")
            mx += [f"v_max_f32 v{m0_}, v{m0_}, v{m1_}", f"v_cmp_lt_f32 vcc, {f32(THR)}, v{m0_}"]
            mx = s.adv_scalar() + mx
            mx += [f"s_cmp_eq_u32 {sCI}, 7"] if par == 0 else [f"s_add_u32 {sCI}, {sCI}, 1"]
            mi = iter(mx)
            def nm():
                x = next(mi, None)
                if x: a(x)
            for f in range(8, 16):
                r = rds(f + 3)
                fill = [[r[0], nm], ([r[1]] if len(r) > 1 else [nm]) + ([nm] if f >= 12 else []), [nm]]
                pv(par, f, fill)
            assert next(mi, None) is None
            R_ = a.new("L_rare"); Bk = a.new("L_back")
            a(f"s_cbranch_vccnz {R_}")
            a.lab(Bk)
            rare.append((R_, Bk, nx))
        L = a.new("L_al"); F = a.new("L_af")
        for x in s.adv_scalar(): a(x)
        a.lab(L)
        step(0)
        assert q.q == q0, (q.q, q0)
        a(f"s_cbranch_scc1 {F}")
        step(1)
        assert q.q == q0
        a(f"s_branch {L}")
        for (R_, Bk, nx) in rare:
            a.lab(R_)
            a("s_nop 7")
            for qt in range(3):
                rowmax(nx, qt, vM + qt, vM + 4)
                a(f"v_max_f32 v{vM+qt}, 0, v{vM+qt}\nv_sub_f32 v{vM+5}, 0, v{vM+qt}\nv_exp_f32 v{vM+5}, v{vM+5}")
                for r in range(8): a(f"v_sub_f32 v{S(nx,qt)+r}, v{S(nx,qt)+r}, v{vM+qt}")
                for r in range(4): a(f"v_sub_f32 v{vCI+qt*4+r}, v{vCI+qt*4+r}, v{vM+qt}")
                for r in range(4): a(f"v_mul_f32 v{vL+qt*4+r}, v{vL+qt*4+r}, v{vM+5}")
                for dt in range(8):
                    for r in range(4): a(f"v_mul_f32 v{acc(dt,qt)+r}, v{acc(dt,qt)+r}, v{vM+5}")
            a(f"s_nop 1\ns_branch {Bk}")
        a.lab(F)
        for f in range(8, 11):
            for x in rds(f, vb=16384): x()
        for i in range(24):
            ex(1, i)()
            if i >= 2 and i % 2 == 0: cv(1, i // 2 - 1)()
        ones(1, 0); cv(1, 11)(); ones(1, 1); a("s_nop 0"); ones(1, 2)
        for f in range(8, 16):
            r = rds(f + 3, vb=16384) if f + 3 < 16 else [lambda: None, lambda: None]
            pv(1, f, [[r[0]], [r[1]], []])
        a("s_nop 6")
        s.stamp()
        a(f"s_setpc_b64 {LR2}")

    def cgemm(s, n, stop, sig=0, f="F_GEMM"):
        s.a(f"s_mov_b32 {sCN}, {n}\ns_mov_b32 {sSTOP}, {stop}\ns_mov_b32 {sSTOP2}, {2 if stop == 1 else n}\ns_mov_b32 {sSIG}, {sig}")
        s.prio(False); s.call(f, LR2); s.prio(True)
    def catt(s, sel):
        s.a(f"s_mov_b32 {sSEL}, {sel}"); s.prio(False); s.call("F_ATT", LR2); s.prio(True)
    def epi_in(s, f, sig):
        m = s.o.get("epi", 1)
        def E(i): s.call(f"F_EPI{i}"); s.extra(4)
        if m == 1:
            s.I(f); E(0); E(1); E(2); s.B()
            s.I(f); s.B()
            s.I(f); s.W(20); s.vq = s.vq[-2:]; s.B()
        elif m == 2:
            E(0); E(1); E(2); s.I(f); s.B()
            s.I(f); s.W(20); s.vq = s.vq[-2:]; s.B()
            s.a(f"s_mov_b32 {sSIG}, {sig}"); s.call("F_SIG")
            s.unit(f)
            return
        elif m == 3:
            E(0); s.I(f); E(1); s.B()
            E(2); s.I(f); s.B()
            s.I(f); s.W(20); s.vq = s.vq[-2:]; s.B()
        s.a(f"s_mov_b32 {sSIG}, {sig}"); s.call("F_SIG")
    def prio(s, loader):
        p = s.o.get("lprio"); c = s.o.get("cprio")
        if p is None and c is None: return
        s.a(f"s_setprio {(p or 0) if loader else (c or 0)}")

    def touch_w(s, kind):
        a = s.a
        a(f"s_lshr_b32 {sT0}, {sWG}, 4")
        if kind == "o16":
            a(f"s_and_b32 {sT1}, {sT0}, 8\ns_add_u32 {sT0}, {sT0}, {sT1}\ns_lshl_b32 {sT1}, {sHH4}, 1\ns_add_u32 {sT0}, {sT0}, {sT1}\ns_lshl_b32 {sA}, {sW}, 15"); n = 2
        elif kind == "o8":
            a(f"s_lshr_b32 {sA}, {sT0}, 3\ns_lshl_b32 {sA}, {sA}, 2\ns_add_u32 {sA}, {sA}, {sW}\ns_lshl_b32 {sA}, {sA}, 14")
            a(f"s_and_b32 {sT0}, {sT0}, 7\ns_lshl_b32 {sT1}, {sHH4}, 1\ns_add_u32 {sT0}, {sT0}, {sT1}\ns_add_u32 {sT0}, {sT0}, 32"); n = 1
        else:
            a(f"s_add_u32 {sT0}, {sT0}, 48\ns_lshl_b32 {sA}, {sW}, 15"); n = 2
        a(f"""s_lshl_b32 {sT0}, {sT0}, 17
        s_lshl_b32 {sT1}, {sPX}, 18
        s_xor_b32 {sT0}, {sT0}, {sT1}
        s_add_u32 {sA}, {sA}, {sT0}
        v_lshrrev_b32 v{vT+3}, 3, v0
        v_lshlrev_b32 v{vT+3}, 11, v{vT+3}""")
        if kind == "tail":
            a(f"s_and_b32 {sT0}, {sCOL}, 128\nv_and_b32 v{vT+2}, 7, v0\nv_lshl_add_u32 v{vT+3}, v{vT+2}, 8, v{vT+3}")
        else:
            a(f"""s_and_b32 {sT0}, {sCOL}, 256
            s_xor_b32 {sT0}, {sT0}, 256
            v_bfe_u32 v{vT+2}, v0, 1, 2
            v_lshl_add_u32 v{vT+3}, v{vT+2}, 9, v{vT+3}
            v_and_b32 v{vT+2}, 1, v0
            v_lshl_add_u32 v{vT+3}, v{vT+2}, 7, v{vT+3}""")
        a(f"s_add_u32 {sA}, {sA}, {sT0}")
        for i in range(n):
            if i: a(f"s_add_u32 {sA}, {sA}, 16384")
            a(f"buffer_load_dword v{vT+2}, v{vT+3}, {srd(SWO)}, {sA} offen")
        s.extra(n)
    def touch_own_o(s, sel):
        a = s.a
        a(f"""s_lshl_b32 {sT0}, {sG}, 3
        s_add_u32 {sT0}, {sT0}, {sHS}
        s_add_u32 {sT0}, {sT0}, {16*sel}
        s_lshl_b32 {sT1}, {sPM}, 5
        s_add_u32 {sT0}, {sT0}, {sT1}
        s_mul_i32 {sA}, {sT0}, 49152
        s_add_u32 {sA}, {sA}, {WS_O}
        s_mul_i32 {sT0}, {sW}, 12288
        s_add_u32 {sA}, {sA}, {sT0}
        v_lshlrev_b32 v{vT+3}, 7, v0
        buffer_load_dword v{vT+2}, v{vT+3}, {srd(SWS)}, {sA} offen sc1
        s_add_u32 {sA}, {sA}, 4096
        buffer_load_dword v{vT+2}, v{vT+3}, {srd(SWS)}, {sA} offen sc1""")
        s.extra(2)
    def lrun_x(s, f, cur, end, ev):
        for u in sorted(ev):
            assert cur <= u < end
            s.lrun(f, cur, u); s.I(f); ev[u](); s.WB(); cur = u + 1
        s.lrun(f, cur, end)

    def programs(s):
        a = s.a
        PH = s.o.get("phook", 11)
        a.lab("L_g1t1")
        s.lstart(0)
        R1 = s.o.get("rp1", [])
        s.first_q(0, R1, s.o.get("rp1pos", []))
        s.setA(0, 0); s.unit("F_IA0")
        if R1:
            s.att_mixed(1, max(R1) + 2, R1); s.lrun("F_IAM", max(R1) + 2, 15)
        else:
            s.lrun("F_IAM", 1, 15)
        s.unit("F_IAL")
        s.setQ(1, 0); s.unit("F_IQ"); s.unit("F_IQ"); s.call("F_GADR"); s.unit("F_IQ")
        s.cgemm(16, 1); s.call("F_PACKQ"); s.call("F_ASET"); s.B(); s.catt(1)
        s.B(); s.lstart(67); s.setO(3); s.epi_in("F_IO", 3)
        H = s.o.get("help", {})
        s.chk2("F_IO", "F_IO", (1, 0)); s.lrun_x("F_IO", 8, 14, {H["o8"]: lambda: s.touch_w("o8")} if "o8" in H else {})
        s.chk2("F_IO", "F_IO", (2, 0)); s.lrun("F_IO", 16, 24)
        if "tail" in H: s.touch_w("tail")
        s.ldrain()
        s.need_block((3, 0)); s.call("F_FPRE"); s.W(0); s.vq = []; s.call("F_FCHK"); s.B()
        s.setO(0); s.I("F_IT"); s.I("F_IT"); s.WB(s.nu - 2); s.I("F_IT")
        a.lab("L_tail_loader")
        tl_state = (list(s.vq), s.nu)
        s.lrun("F_IT", 3, 6)
        s.chk2("F_IT", "F_IT", (3, 1)); s.lrun("F_IT", 8, PH + 1)
        s.chk2("F_IT", "F_IT", "partner"); s.lrun("F_IT", PH + 3, 16)
        s.ldrain()
        a("s_branch L_finish")
        a.lab("L_g1t0")
        s.init_flags(); s.call("F_GADR"); s.B()
        s.cgemm(16, 16); s.call("F_PACKQ"); s.call("F_ASET"); s.B(); s.catt(0)
        s.B(); s.lstart(35); s.setQ(1, 3); s.epi_in("F_IQ", 1)
        def h1(): s.touch_own_o(0); s.touch_w("o16")
        s.lrun_x("F_IQ", 6, 16, {H["o16"]: h1} if "o16" in H else {})
        s.setA(1, 0); s.unit("F_IA0"); s.unit("F_IAM"); s.unit("F_IAM"); s.att_loader_first(3, 14)
        s.chk2("F_IAM", "F_IAL", (0, 0))
        s.setO(0); s.unit("F_IO"); s.unit("F_IO"); s.call("F_GADR"); s.unit("F_IO")
        s.cgemm(24, 1)
        a.lab("L_tail_compute")
        s.pstore(0, 12)
        s.call("F_TADR")
        a(f"s_cmp_eq_u32 {sG}, 1\ns_cbranch_scc1 L_tc2\ns_barrier")
        a.lab("L_tc2")
        s.B()
        a(f"s_mov_b32 {sCN}, 16\ns_mov_b32 {sSTOP}, 4\ns_mov_b32 {sSTOP2}, {PH}\ns_mov_b32 {sSIG}, 7")
        s.prio(False)
        s.call("F_TAIL", LR2)
        vP = vACC + 48
        a("s_waitcnt vmcnt(0)")
        for r in range(0, 48, 2): a(f"v_pk_add_f32 {vr(vACC+r, 2)}, {vr(vACC+r, 2)}, {vr(vP+r, 2)}")
        dst = lambda mt, pr: vS + (mt * 2 + pr) * 4
        a(f"""v_and_b32 v{vT}, 15, v0
        v_lshlrev_b32 v{vT}, 12, v{vT}
        v_lshrrev_b32 v{vT+2}, 5, v0
        v_bfe_u32 v{vT+3}, v0, 4, 1
        v_lshl_or_b32 v{vT+2}, v{vT+3}, 1, v{vT+2}
        v_lshl_add_u32 v{vT}, v{vT+2}, 4, v{vT}
        s_mul_i32 {sT0}, {sMB}, 192
        s_mul_i32 {sT1}, {sW}, 48
        s_add_u32 {sT0}, {sT0}, {sT1}
        s_lshl_b32 {sT0}, {sT0}, 12
        s_lshl_b32 {sT1}, {sP}, 11
        s_add_u32 {sT0}, {sT0}, {sT1}
        s_add_u32 {sT0}, {sT0}, {sCOL}""")
        for mt in range(3):
            s.pack_mt(mt, 2, None, dst)
            for pr in range(2):
                a(f"buffer_store_dwordx4 {vr(dst(mt, pr))}, v{vT}, {srd(SOUT)}, {sT0} offen offset:{pr*64}")
            if mt < 2: a(f"s_add_u32 {sT0}, {sT0}, 65536")
        a("s_branch L_finish")
        QH = 2 * SLOT + 32768
        a.lab("L_g2t0")
        s.init_flags(); s.call("F_GADR"); s.B()
        s.cgemm(16, 16); s.call("F_PACKQ"); s.call("F_GADR"); s.B()
        s.cgemm(16, 16)
        a(f"s_mul_i32 {sT0}, {sW}, 11264\ns_add_u32 {sT0}, {sT0}, {QH}\nv_add_u32 v{vT}, {sT0}, v{vLO}")
        s.B()
        for i in range(12): a(f"ds_write_b128 v{vT}, {vr(vQ + 4*i)} offset:{i*1024}")
        s.call("F_ASET")
        a("s_waitcnt lgkmcnt(0)")
        s.call("F_PACKQ"); s.B(); s.catt(0)
        for i in range(3): s.call(f"F_EPI{i}")
        s.call("F_GADR"); s.B()
        s.cgemm(16, s.o.get("h2", 3), 1)
        s.B(); s.lstart(67); s.setA(1, 3); s.lrun("F_IAM", 3, 14)
        s.chk2("F_IAM", "F_IAL", (2, 0))
        s.setO(16); s.unit("F_IO"); s.unit("F_IO"); s.call("F_GADR"); s.unit("F_IO")
        s.cgemm(8, 1, 0, "F_GEMMC")
        a("s_branch L_tail_compute")
        a.lab("L_g2t1")
        R2 = s.o.get("rp2", [1, 3, 5, 7, 9, 11])
        s.lstart(0)
        s.warm()
        s.first_q(1, R2, s.o.get("rp2pos", [5, 7, 9, 11, 13, 14]))
        s.setQ(0, 0); s.unit("F_IQ"); s.unit("F_IQ"); s.att_loader_first(2, 16, "F_IQ")
        AU = lambda u: s.AU(u, R2)
        s.setA(0, 0); s.unit("F_IA0"); AU(1); s.WB(); AU(2)
        a(f"s_mul_i32 {sT0}, {sW}, 11264\ns_add_u32 {sT0}, {sT0}, {QH}\nv_add_u32 v{vT}, {sT0}, v{vLO}")
        s.B(); s.WB()
        for i in range(12): a(f"ds_read_b128 {vr(vQ + 4*i)}, v{vT} offset:{i*1024}")
        a("s_waitcnt lgkmcnt(0)")
        s.WB(s.nu - 2); AU(3)
        if R2 and min(R2) >= 8:
            c = min(R2)
            s.lrun("F_IAM", 4, c - 2); s.chk2("F_IAM", "F_IAM", (0, 0))
            for u in range(c, 16): s.AU(u, R2); s.WB()
            s.setO(0); s.AU(16, [], "F_IO"); s.WB(); s.AU(17, [], "F_IO"); s.WB(); s.lrun("F_IO", 2, 6)
        else:
            last = max(R2 + [3]) + 2
            s.att_mixed(4, last, R2); s.lrun("F_IAM", last, 14)
            s.chk2("F_IAM", "F_IAL", (0, 0))
            s.setO(0); s.lrun("F_IO", 0, 6)
        s.chk2("F_IO", "F_IO", (1, 0)); s.lrun("F_IO", 8, 16)
        s.setA(1, 0); s.unit("F_IA0"); s.unit("F_IAM"); s.call("F_ASET"); s.unit("F_IAM")
        s.catt(1)
        s.B(); s.lstart(83); s.setO(19); s.epi_in("F_IO", 3)
        s.chk2("F_IO", "F_IO", (3, 0))
        s.setO(0); s.unit("F_IT"); s.unit("F_IT"); s.unit("F_IT")
        assert (s.vq, s.nu) == tl_state, (s.vq, s.nu, tl_state)
        a("s_branch L_tail_loader")

    def first_q(s, sel, R, pos):
        a = s.a
        s.setQ(sel, 0, first=True)
        sw = s.o.get("sw")
        s.I("F_IQ"); s.I("F_IQ")
        assert len(R) == len(pos)
        if R: s.preload_set()
        def rest(nxt):
            for u in range(nxt, max(pos + [0]) + 1):
                s.I("F_IQ")
                for k in range(len(R)):
                    if pos[k] == u:
                        s.room(8)
                        s.preload(k, R[k])
                s.WB(); nxt = u + 1
            s.lrun("F_IQ", nxt, 16)
        if not sw:
            assert min(pos + [99]) >= 3
            s.WB(0); s.I("F_IQ"); rest(3)
            return
        LW = a.new("L_sw"); LD = a.new("L_swd")
        a(f"""s_lshr_b32 {sT0}, {sWG}, 3
        v_lshrrev_b32 v{vT+1}, 5, v0
        s_and_b32 {sT2}, {sW}, 1
        s_cmp_ge_u32 {sW}, 2
        s_cbranch_scc1 {LW}
        s_and_b32 {sT1}, {sMB}, 4
        s_mul_i32 {sT1}, {sT1}, 192
        s_mul_i32 {sT0}, {sT0}, 24
        s_add_u32 {sT0}, {sT0}, {sT1}
        s_lshl_b32 {sCNT}, {sT0}, 11
        s_lshl_b32 {sT2}, {sT2}, 8
        s_add_u32 {sCNT}, {sCNT}, {sT2}
        v_and_b32 v{vT}, 31, v0
        v_min_u32 v{vT}, 23, v{vT}
        v_lshlrev_b32 v{vT}, 11, v{vT}
        v_lshl_add_u32 v{vT+1}, v{vT+1}, 7, v{vT}
        s_branch {LD}""")
        a.lab(LW)
        a(f"""s_lshl_b32 {sCNT}, {sT0}, 14
        s_lshl_b32 {sT2}, {sT2}, 20
        s_add_u32 {sCNT}, {sCNT}, {sT2}
        s_xor_b32 {sT1}, {sHH4}, {sPX}
        s_lshl_b32 {sT1}, {sT1}, 8
        v_lshlrev_b32 v{vT+1}, 19, v{vT+1}
        v_bfe_u32 v{vT}, v0, 4, 1
        v_lshl_add_u32 v{vT+1}, v{vT}, 13, v{vT+1}
        v_bfe_u32 v{vT}, v0, 3, 1
        v_mul_u32_u24 v{vT}, {24*256}, v{vT}
        v_xor_b32 v{vT}, {sT1}, v{vT}
        v_add_u32 v{vT+1}, v{vT+1}, v{vT}
        v_and_b32 v{vT}, 7, v0
        v_lshl_add_u32 v{vT+1}, v{vT}, 7, v{vT+1}""")
        a.lab(LD)
        def T(k0): a(f"s_mov_b32 {sBIT}, {k0}"); s.call("F_TOUCH"); s.extra(1)
        nxt = 2
        sched = {int(k): v for k, v in sw.items()}
        def iss():
            nonlocal nxt
            if nxt in sched: T(sched[nxt])
            s.I("F_IQ"); nxt += 1
        if 2 in sched: T(sched.pop(2))
        s.WB(0); iss(); iss(); s.WB()
        while nxt <= max(list(sched) + [0]): iss(); s.WB()
        assert min(pos + [99]) >= nxt
        rest(nxt)

    def warm(s):
        if not s.o.get("warm"): return
        a = s.a
        L3 = a.new("L_w3"); LD = a.new("L_wd")
        a(f"""s_lshr_b32 {sT0}, {sWG}, 4
        s_cmp_eq_u32 {sW}, 3
        s_cbranch_scc1 {L3}
        s_and_b32 {sT1}, {sMB}, 4
        s_mul_i32 {sT1}, {sT1}, 192
        s_mul_i32 {sT0}, {sT0}, 48
        s_add_u32 {sT0}, {sT0}, {sT1}
        s_lshl_b32 {sT1}, {sW}, 4
        s_add_u32 {sT0}, {sT0}, {sT1}
        s_lshl_b32 {sT0}, {sT0}, 11
        v_and_b32 v{vT}, 15, v0
        v_lshlrev_b32 v{vT}, 11, v{vT}
        v_lshrrev_b32 v{vT+1}, 4, v0
        v_lshl_add_u32 v{vT}, v{vT+1}, 7, v{vT}""")
        for k in range(4): a(f"buffer_load_dword v{vM+k}, v{vT}, {srd(SX)}, {sT0} offen offset:{k*512}")
        a(f"s_branch {LD}")
        a.lab(L3)
        a(f"""s_lshl_b32 {sT0}, {sT0}, 15
        s_xor_b32 {sT1}, {sHH4}, {sPX}
        s_lshl_b32 {sT1}, {sT1}, 8
        s_add_u32 {sT0}, {sT0}, {sT1}
        v_and_b32 v{vT}, 7, v0
        v_lshlrev_b32 v{vT}, 7, v{vT}
        v_bfe_u32 v{vT+1}, v0, 3, 2
        v_lshl_add_u32 v{vT}, v{vT+1}, 13, v{vT}
        v_lshrrev_b32 v{vT+1}, 5, v0
        v_lshl_add_u32 v{vT}, v{vT+1}, 19, v{vT}
        s_xor_b32 {sT1}, {sT0}, {24*256}""")
        for r in (sT0, sT1):
            for k in range(8):
                a(f"buffer_load_dword v{vM + k % 4}, v{vT}, {srd(SWQ)}, {r} offen")
                if k < 7: a(f"s_add_u32 {r}, {r}, {2 << 19}")
        a.lab(LD)

    def build(s):
        K = NAME + "_kernel"; a = s.a
        s.setup(K)
        s.programs()
        s.loader_funcs()
        s.gemm_addr_func("F_GADR", False); s.gemm_addr_func("F_TADR", True)
        def hk():
            X = a.new("L_hk"); Y = a.new("L_hy")
            a(f"s_waitcnt vmcnt(10)\ns_cmp_eq_u32 {sCI}, 1\ns_cbranch_scc1 {Y}\ns_waitcnt vmcnt(0)")
            a.lab(Y)
            a("s_barrier")
            a(f"s_cmp_eq_u32 {sSIG}, 0\ns_cbranch_scc1 {X}"); s.call("F_SIG"); a.lab(X)
        s.gemm_func("F_GEMM", False, hk)
        s.misc_funcs()
        s.att_func()
        def hk2():
            X = a.new("L_hk"); Y = a.new("L_hy")
            a(f"s_cmp_eq_u32 {sSIG}, 0\ns_cbranch_scc1 {X}")
            a("s_waitcnt vmcnt(0)\ns_barrier"); s.call("F_SIG"); a(f"s_mov_b32 {sSIG}, 0\ns_branch L_hk2end")
            a.lab(X)
            a("s_barrier")
            a(f"""s_xor_b32 {sT0}, {sWG}, 2
            s_mul_i32 {sT0}, {sT0}, 49152
            s_mul_i32 {sT1}, {sW}, 12288
            s_add_u32 {sT0}, {sT0}, {sT1}
            s_add_u32 {sT0}, {sT0}, {WS_P}
            v_lshlrev_b32 v{vT}, 4, v0""")
            for i in range(12):
                if i % 4 == 0 and i: a(f"s_add_u32 {sT0}, {sT0}, 4096")
                a(f"buffer_load_dwordx4 {vr(vACC + 48 + 4*i)}, v{vT}, {srd(SWS)}, {sT0} offen offset:{(i % 4)*1024} sc1")
            a.lab("L_hk2end")
        s.gemm_func("F_TAIL", True, hk2)
        s.stamp_funcs()
        s.finish()
        l = a.l
        if s.o.get("nocomp"): l = [x for x in l if not re.match(r"\s+(v_mfma|ds_read|v_exp|v_cvt_pk|v_max3|s_cbranch_vccnz)", x)]
        if s.o.get("noload"): l = [x for x in l if not (re.match(r"\s+buffer_load.* lds", x) or "s_cbranch_vccnz" in x)]
        if s.o.get("nostore"): l = [x for x in l if not re.match(r"\s+buffer_store_dwordx4", x)]
        out = ["; @launch grid=(256,1,1) block=(512,1,1) lds=163840", '.amdgcn_target "amdgcn-amd-amdhsa--gfx950"', ".text"] + l
        out += ['.section .rodata,"a"', ".p2align 6", f""".amdhsa_kernel {K}
  .amdhsa_next_free_vgpr 256
  .amdhsa_next_free_sgpr 102
  .amdhsa_accum_offset 256
  .amdhsa_group_segment_fixed_size 0
  .amdhsa_kernarg_size 104
  .amdhsa_user_sgpr_count 2
  .amdhsa_user_sgpr_kernarg_segment_ptr 1
  .amdhsa_system_sgpr_workgroup_id_x 1
.end_amdhsa_kernel"""]
        return "\n".join(out) + "\n"

if __name__ == "__main__":
    import argparse, json
    ap = argparse.ArgumentParser()
    ap.add_argument("-o", default="k.s"); ap.add_argument("--stamps", action="store_true"); ap.add_argument("--opts", default="{}")
    A = ap.parse_args()
    open(A.o, "w").write(Gen(A.stamps, json.loads(A.opts)).build())
```

```python
import sys, re, math, struct
NAME = "concat_heads__mha_block_cached__gqa_block_cached__near_ridge"

SLOT = 40960
WS_F = 0x0
WS_O = 0x2000000
WS_P = 0x4000000
WS_T = 0x8000000
WS_SIZE = 308281344
THR = 8.0
QSCALE = math.log2(math.e) / math.sqrt(128.0)
def f32(x): return "0x%08x" % struct.unpack("<I", struct.pack("<f", x))[0]

class Asm:
    def __init__(s): s.l = []; s.uid = 0
    def __call__(s, t):
        for x in t.split("\n"):
            x = x.strip()
            if x: s.l.append("    " + x)
    def lab(s, n): s.l.append(n + ":")
    def c(s, t): s.l.append("    ; " + t)
    def new(s, p): s.uid += 1; return f"{p}_{s.uid}"

class LQ:
    def __init__(s, a): s.a = a; s.q = []
    def rd(s, ins, tag):
        s.a(ins); s.q.append(tag); assert len(s.q) <= 15, "lgkm overflow"
    def need(s, *tags):
        idx = [i for i, t in enumerate(s.q) if t in tags]
        if not idx: return
        n = len(s.q) - 1 - idx[-1]
        s.a(f"s_waitcnt lgkmcnt({n})"); s.q = s.q[idx[-1] + 1:]

def vr(b, n=4): return f"v[{b}:{b+n-1}]"
def mfma(d, a_, b_, c): return f"v_mfma_f32_16x16x32_bf16 {vr(d)}, {vr(a_)}, {vr(b_)}, {c if isinstance(c, str) else vr(c)}"

sWG, sW, sP, sG, sMB, sHS, sROT, sPM, sTEAM, sCHK = "s2", "s3", "s4", "s5", "s6", "s7", "s8", "s9", "s10", "s11"
SX, SWQ, SWO, SK, SV, SWS, SOUT, SDBG = 28, 32, 36, 40, 44, 48, 52, 56
def srd(b): return f"s[{b}:{b+3}]"
sT0, sT1, sT2, sT3 = "s60", "s61", "s62", "s63"
sLS, sLI, sBA, sBB, sROFF, sKST, sA, sB0, sB1, sM0, sKB, sTK, sTV, sW1K = \
    "s64", "s65", "s66", "s67", "s68", "s69", "s70", "s71", "s72", "s73", "s74", "s75", "s76", "s77"
sCS, sCI, sCN, sSTOP, sDL, sSIG, sSEL = "s12", "s13", "s14", "s15", "s16", "s17", "s18"
sFLG, sNEED, sBIT, sCNT = "s19", "s20", "s21", "s22"
LR1, LR2 = "s[24:25]", "s[26:27]"
sSTAMP = 80
sSTR, sXOR = "s78", "s79"
sHH4, sCOL, sSTOP2 = "s23", "s0", "s1"
sPX = "s95"

vA0, vA1, vA2 = 1, 2, 3
vT = 4
vONES = 8
vCI = 12
vL = 24
vRING = 36
vM = 52
vLX, vLWQ, vLO, vLWO, vLK, vLV = 58, 59, 60, 61, 62, 63
vS = 64
vACC = 112
vQ = 208
def acc(nt, mt): return vACC + (nt * 3 + mt) * 4
def qreg(mt, ks): return vQ + (mt * 4 + ks) * 4

class Gen:
    def __init__(s, stamps=False, opts=None):
        s.stamps = stamps; s.a = Asm(); s.o = opts or {}

    def stamp(s):
        if s.stamps: s.a("s_call_b64 s[96:97], F_STAMP")
    def trace(s, tag=0):
        if s.o.get("trace", 0) > (1 if tag else 0): s.a(f"s_mov_b32 s99, {tag}\ns_call_b64 s[96:97], F_TRACE")
    def stamp_funcs(s):
        a = s.a
        if s.o.get("trace"):
            a.lab("F_TRACE")
            a(f"""s_cmp_lg_u32 {sW}, 1
            s_cbranch_scc1 L_trx
            s_memrealtime s[100:101]
            s_waitcnt lgkmcnt(0)
            s_and_b32 s100, s100, 0xfffffffc
            s_or_b32 s100, s100, s99
            v_mov_b32 v{vT+2}, s100
            v_mov_b32 v{vT+3}, 0
            buffer_store_dword v{vT+2}, v{vT+3}, {srd(SWS)}, s98 offen
            s_add_u32 s98, s98, 4""")
            a.lab("L_trx")
            a("s_setpc_b64 s[96:97]")
        if not s.stamps: return
        a.lab("F_STAMP")
        a(("s_memtime" if s.o.get("cyc") else "s_memrealtime") + " s[100:101]\ns_waitcnt lgkmcnt(0)")
        for i in range(sSTAMP + 14, sSTAMP, -1): a(f"s_mov_b32 s{i}, s{i-1}")
        a(f"s_mov_b32 s{sSTAMP}, s100\ns_setpc_b64 s[96:97]")
    def finish(s):
        a = s.a
        a.lab("L_finish")
        if "probe" in s.o:
            g_, t_, back = s.o["probe"]
            s.stamp()
            L = a.new("L_spin")
            a(f"""s_sub_u32 s99, s{sSTAMP + back}, s98
            s_lshl_b32 {sT0}, {sG}, 1
            s_add_u32 {sT0}, {sT0}, {sTEAM}
            s_cmp_eq_u32 {sT0}, {g_*2 + t_}
            s_cselect_b32 s99, s99, 0
            s_add_u32 s99, s99, 20000""")
            a.lab(L)
            a(f"s_memrealtime s[100:101]\ns_waitcnt lgkmcnt(0)\ns_sub_u32 s100, s100, s98\ns_cmp_lt_u32 s100, s99\ns_cbranch_scc1 {L}\ns_endpgm")
        if "spinto" in s.o:
            L = a.new("L_spin"); a.lab(L)
            a(f"s_memrealtime s[100:101]\ns_waitcnt lgkmcnt(0)\ns_sub_u32 s100, s100, s98\ns_cmp_lt_u32 s100, {s.o['spinto']}\ns_cbranch_scc1 {L}")
        if s.stamps:
            a("s_waitcnt vmcnt(0)"); s.stamp()
            a(f"s_lshl_b32 {sT0}, {sWG}, 1\ns_add_u32 {sT0}, {sT0}, {sTEAM}\ns_lshl_b32 {sT0}, {sT0}, 2\ns_add_u32 {sT0}, {sT0}, {sW}\ns_lshl_b32 {sT0}, {sT0}, 6\ns_add_u32 {sT0}, {sT0}, {WS_T}")
            a(f"v_mov_b32 v{vT}, 0")
            a(f"s_mov_b32 s{sSTAMP+15}, 0")
            for i in range(16):
                a(f"v_mov_b32 v{vT+1}, s{sSTAMP+i}\nbuffer_store_dword v{vT+1}, v{vT}, {srd(SWS)}, {sT0} offen offset:{4*i}\ns_nop 1")
            a("s_waitcnt vmcnt(0)")
        a.lab("L_end")
        a("s_endpgm")

    def setup(s, K):
        a = s.a
        a.l.append(f".globl {K}\n.p2align 8\n.type {K},@function\n{K}:")
        a(f"""s_cmp_ge_u32 {sWG}, 256
        s_cbranch_scc1 L_end
        s_and_b32 {sT2}, {sWG}, 7
        s_lshr_b32 {sP}, {sT2}, 2
        s_mul_i32 {sT0}, {sP}, 40
        s_add_u32 s60, s0, {sT0}
        s_addc_u32 s61, s1, 0
        s_load_dwordx2 s[{SX}:{SX+1}], s[60:61], 0
        s_load_dwordx2 s[{SWQ}:{SWQ+1}], s[60:61], 24
        s_load_dwordx2 s[{SK}:{SK+1}], s[60:61], 8
        s_load_dwordx2 s[{SV}:{SV+1}], s[60:61], 16
        s_load_dwordx2 s[{SWO}:{SWO+1}], s[60:61], 32
        s_load_dwordx2 s[{SOUT}:{SOUT+1}], s[0:1], 80
        s_load_dwordx2 s[{SDBG}:{SDBG+1}], s[0:1], 88
        s_load_dwordx2 s[{SWS}:{SWS+1}], s[0:1], 96""")
        if "spinto" in s.o or "probe" in s.o: a("s_memrealtime s[98:99]")
        a(f"""v_lshrrev_b32 v1, 6, v0
        v_and_b32 v0, 63, v0
        v_readfirstlane_b32 {sW}, v1
        s_bfe_u32 {sG}, {sWG}, 0x10003
        s_lshr_b32 {sCI}, {sWG}, 4
        s_and_b32 {sCN}, {sCI}, 3
        s_lshr_b32 {sCI}, {sCI}, 2
        s_add_u32 {sROT}, {sCN}, {sCI}
        s_and_b32 {sROT}, {sROT}, 3
        s_and_b32 {sMB}, {sT2}, 1
        s_lshl_b32 {sMB}, {sMB}, 2
        s_add_u32 {sMB}, {sMB}, {sCN}
        s_bfe_u32 {sHS}, {sT2}, 0x10001
        s_lshl_b32 {sHS}, {sHS}, 2
        s_add_u32 {sHS}, {sHS}, {sCI}
        s_lshl_b32 {sPM}, {sP}, 3
        s_add_u32 {sPM}, {sPM}, {sMB}
        s_lshr_b32 {sTEAM}, {sW}, 2
        s_and_b32 {sW}, {sW}, 3
        s_lshl_b32 {sW1K}, {sW}, 10
        s_lshl_b32 {sFLG}, {sPM}, 8
        s_add_u32 {sFLG}, {sFLG}, {WS_F}
        s_bfe_u32 {sCHK}, {sWG}, 0x30004
        s_add_u32 {sCHK}, {sCHK}, 4""")
        if s.o.get("rnd", 1):
            a(f"""s_mul_i32 {sT3}, {sWG}, 0x9E3779B1
            s_lshr_b32 {sSTR}, {sT3}, 29
            s_lshl_b32 {sSTR}, {sSTR}, 14
            s_or_b32 {sSTR}, {sSTR}, 8192
            s_bfe_u32 {sXOR}, {sT3}, 0x40018
            s_lshl_b32 {sXOR}, {sXOR}, 13
            s_or_b32 {sXOR}, {sXOR}, 0x400000""")
        else:
            a(f"s_mov_b32 {sSTR}, 8192\ns_mov_b32 {sXOR}, {hex(0x400000 + s.o.get('xo', 0)*8192)}")
        for (b, size) in [(SX, 3145728), (SWQ, 8388608), (SWO, 8388608), (SK, 67108864), (SV, 67108864),
                          (SWS, WS_SIZE), (SOUT, 6291456), (SDBG, 256)]:
            a(f"s_mov_b32 s{b+2}, {size}\ns_mov_b32 s{b+3}, 0x20000")
        a(f"""v_lshrrev_b32 v1, 5, v0
        v_lshlrev_b32 v1, 6, v1
        v_bfe_u32 v2, v0, 2, 3
        v_and_b32 v3, 3, v0
        s_lshl_b32 {sT2}, {sW}, 3
        v_add_u32 v4, {sT2}, v2
        v_lshrrev_b32 v5, 2, v4
        v_sub_u32 v5, 0, v5
        v_and_b32 v5, 3, v5
        v_xor_b32 v5, v5, v3
        v_lshl_add_u32 v5, v5, 4, v1
        v_lshl_add_u32 v{vLX}, v4, 11, v5
        s_and_b32 {sT2}, {sW}, 1
        s_lshl_b32 {sT3}, {sT2}, 1
        v_xor_b32 v5, {sT3}, v3
        v_lshl_add_u32 v5, v5, 4, v1
        v_lshl_add_u32 v{vLWQ}, v4, 13, v5
        v_lshl_add_u32 v{vLWO}, v4, 11, v5
        v_lshlrev_b32 v5, 4, v0
        v_add_u32 v{vLO}, {sW1K}, v5
        v_xor_b32 v5, {sT2}, v3
        v_lshl_add_u32 v5, v5, 4, v1
        v_lshl_add_u32 v{vLK}, v4, 8, v5
        v_lshrrev_b32 v5, 2, v2
        v_lshlrev_b32 v5, 1, v5
        v_xor_b32 v5, v5, v3
        v_lshl_add_u32 v5, v5, 4, v1
        v_lshl_add_u32 v{vLV}, v4, 8, v5""")
        if s.stamps:
            for i in range(16): a(f"s_mov_b32 s{sSTAMP+i}, 0")
        if s.o.get("trace"):
            a(f"s_lshl_b32 s98, {sWG}, 1\ns_add_u32 s98, s98, {sTEAM}\ns_lshl_b32 s98, s98, 10\ns_add_u32 s98, s98, {WS_T + 0x100000}")
        a("s_waitcnt lgkmcnt(0)")
        a(f"""s_and_b32 {sHH4}, {sHS}, 4
        s_and_b32 {sCOL}, {sHS}, 3
        s_lshl_b32 {sCOL}, {sCOL}, 1
        s_lshr_b32 {sPX}, {sPM}, 2
        s_and_b32 {sT0}, {sPX}, {1 if s.o.get("px", 1) else 0}
        s_xor_b32 {sT0}, {sT0}, {sG}
        s_add_u32 {sCOL}, {sCOL}, {sT0}
        s_lshl_b32 {sPX}, {sPX}, 3
        s_and_b32 {sPX}, {sPX}, {31 if s.o.get("px", 1) else 0}
        s_lshl_b32 {sCOL}, {sCOL}, 8
        s_lshl_b32 {sT0}, {sHH4}, 5
        s_add_u32 {sCOL}, {sCOL}, {sT0}""")
        s.stamp()
        s.prio(True)
        a(f"""s_cmp_eq_u32 {sG}, 0
        s_cbranch_scc0 L_g2
        s_cmp_eq_u32 {sTEAM}, 0
        s_cbranch_scc1 L_g1t0
        s_branch L_g1t1""")
        a.lab("L_g2")
        a(f"s_cmp_eq_u32 {sTEAM}, 0\ns_cbranch_scc1 L_g2t0\ns_branch L_g2t1")

    def call(s, f, lr=LR1): s.a(f"s_call_b64 {lr}, {f}")
    def W(s, n):
        if s.o.get("trace", 0) > 1:
            s.trace(1); s.a(f"s_waitcnt vmcnt({n + 1 if n else 0})"); s.trace(2)
        else: s.a(f"s_waitcnt vmcnt({n})")
    def B(s): s.a("s_barrier")
    def head(s, dst, sel):
        s.a(f"s_lshl_b32 {dst}, {sG}, 3\ns_add_u32 {dst}, {dst}, {sHS}")
        if sel: s.a(f"s_add_u32 {dst}, {dst}, 16")
        s.a(f"s_xor_b32 {dst}, {dst}, {sPX}")
    def setQ(s, sel, start, first=False):
        s.head(sT0, 0 if s.o.get("fixwq") else sel)
        s.a(f"""s_lshl_b32 {sBB}, {sT0}, 8
        s_mul_i32 {sBA}, {sMB}, {192*2048}
        s_lshl_b32 {sROFF}, {sROT}, 1
        s_add_u32 {sROFF}, {sROFF}, {sG}
        s_lshl_b32 {sROFF}, {sROFF}, 1
        s_mov_b32 {sLI}, {start}
        s_mov_b32 {sLS}, {start*SLOT}""")
        if first and (s.o.get("warm") or s.o.get("sw")): s.a(f"s_mov_b32 {sROFF}, 0")
    def setO(s, start):
        s.a(f"""s_mul_i32 {sBA}, {sPM}, {32*49152}
        s_add_u32 {sBA}, {sBA}, {WS_O}
        s_lshl_b32 {sROFF}, {sROT}, 1
        s_lshl_b32 {sKST}, {sHH4}, 1
        s_mov_b32 {sLI}, {start}
        s_mov_b32 {sLS}, {(start % 4)*SLOT}""")
    def setA(s, sel, start):
        s.head(sT0, sel)
        s.a(f"""s_lshl_b32 {sT1}, {sMB}, 6
        s_add_u32 {sT0}, {sT0}, {sT1}
        s_lshl_b32 {sKB}, {sT0}, 17
        s_lshr_b32 {sTK}, {sWG}, 4
        s_lshl_b32 {sTK}, {sTK}, 13
        s_mov_b32 {sTV}, {sTK}
        s_mov_b32 {sLI}, {start}
        s_mov_b32 {sLS}, {(start % 4)*SLOT}""")
        if start:
            s.a(f"""s_mul_i32 {sT0}, {sSTR}, {start+1}
            s_add_u32 {sTK}, {sTK}, {sT0}
            s_and_b32 {sTK}, {sTK}, 0x1ffff
            s_mul_i32 {sT0}, {sSTR}, {start-1}
            s_add_u32 {sTV}, {sTV}, {sT0}
            s_and_b32 {sTV}, {sTV}, 0x1ffff""")
    def iss_end(s):
        s.a(f"""s_add_u32 {sLS}, {sLS}, {SLOT}
        s_cmp_eq_u32 {sLS}, {4*SLOT}
        s_cselect_b32 {sLS}, 0, {sLS}
        s_add_u32 {sLI}, {sLI}, 1
        s_setpc_b64 {LR1}""")
    def loader_funcs(s):
        a = s.a
        def gemm_iss(name, kind):
            a.lab(name)
            s.trace()
            if kind == "Q":
                a(f"""s_add_u32 {sT0}, {sLI}, {sROFF}
                s_and_b32 {sT0}, {sT0}, 15
                s_lshl_b32 {sA}, {sT0}, 7
                s_add_u32 {sA}, {sA}, {sBA}
                s_lshl_b32 {sB0}, {sT0}, 19
                s_add_u32 {sB0}, {sB0}, {sBB}""")
                ja, jb, ra, rb, va, vb, fa, fb = 65536, 32*8192, SX, SWQ, vLX, vLWQ, s.o.get("fx", ""), s.o.get("fwq", "")
            else:
                a(f"s_add_u32 {sT0}, {sLI}, {sROFF}\ns_and_b32 {sT0}, {sT0}, 7")
                if kind == "O": a(f"s_and_b32 {sT1}, {sLI}, 0x78\ns_lshl_b32 {sT1}, {sT1}, 1\ns_add_u32 {sT1}, {sT1}, {sKST}")
                else: a(f"s_and_b32 {sT1}, {sLI}, 8\ns_xor_b32 {sT1}, {sT1}, {sKST}\ns_add_u32 {sT1}, {sT1}, 48")
                a(f"""s_add_u32 {sT0}, {sT0}, {sT1}
                s_and_b32 {sT1}, {sT0}, {1 if s.o.get("fixo") else 63}
                s_mul_i32 {sA}, {sT1}, 24576
                s_add_u32 {sA}, {sA}, {sBA}
                s_and_b32 {sT0}, {sT0}, {1 if s.o.get("fixwo") else 63}
                s_lshl_b32 {sB0}, {sT0}, 17
                s_lshl_b32 {sT1}, {sPX}, 18
                s_xor_b32 {sB0}, {sB0}, {sT1}
                s_add_u32 {sB0}, {sB0}, {sCOL}""")
                ja, jb, ra, rb, va, vb, fa, fb = 4096, 32*2048, SWS, SWO, vLO, vLWO, "sc1", s.o.get("fwo", "")
            a(f"s_add_u32 {sM0}, {sLS}, {sW1K}")
            for j in range(6):
                a(f"s_add_u32 m0, {sM0}, {j*4096}")
                a(f"s_add_u32 {sA}, {sA}, {ja}" if j else f"s_xor_b32 {sB1}, {sB0}, 128")
                a(f"buffer_load_dwordx4 v{va}, {srd(ra)}, {sA} offen {fa} lds")
            if kind == "T":
                for oo in range(2):
                    a(f"s_add_u32 m0, {sM0}, {24576 + oo*4096}")
                    a(f"s_add_u32 {sB0}, {sB0}, {jb}" if oo else "s_nop 0")
                    a(f"buffer_load_dwordx4 v{vb}, {srd(rb)}, {sB0} offen {fb} lds")
            else:
                a(f"s_add_u32 {sM0}, {sM0}, {sW1K}")
                for oo in range(2):
                    for hf in range(2):
                        r = sB1 if hf else sB0
                        a(f"s_add_u32 m0, {sM0}, {24576 + oo*8192 + hf*1024}")
                        a(f"s_add_u32 {r}, {r}, {jb}" if oo else "s_nop 0")
                        a(f"buffer_load_dwordx4 v{vb}, {srd(rb)}, {r} offen {fb} lds")
            s.iss_end()
        gemm_iss("F_IQ", "Q"); gemm_iss("F_IO", "O"); gemm_iss("F_IT", "T")
        fk = s.o.get("fk", "nt")
        def half(kind, pos):
            sr, vo, t = (SK, vLK, sTK) if kind == "K" else (SV, vLV, sTV)
            a(f"s_add_u32 {sA}, {sKB}, {t}\ns_xor_b32 {sB0}, {sA}, {sXOR}")
            fill = [f"s_add_u32 {t}, {t}, {sSTR}", f"s_and_b32 {t}, {t}, 0x1ffff", "s_nop 0", "s_nop 0"]
            for it in range(2):
                for hf in range(2):
                    a(f"s_add_u32 m0, {sM0}, {pos*16384 + it*8192 + hf*(1024-128)}\n{fill[it*2+hf]}")
                    a(f"buffer_load_dwordx4 v{vo}, {srd(sr)}, {sA if it == 0 else sB0} offen offset:{hf*128} {fk} lds")
        for name, k0, k1 in (("F_IA0", "K", "K"), ("F_IAM", "V", "K"), ("F_IAL", "V", "V")):
            a.lab(name)
            s.trace()
            a(f"s_add_u32 {sM0}, {sLS}, {sW1K}\ns_add_u32 {sM0}, {sM0}, {sW1K}")
            half(k0, 0); half(k1, 1)
            s.iss_end()
        a.lab("F_SKIP")
        a(f"""s_add_u32 {sTK}, {sTK}, {sSTR}
        s_and_b32 {sTK}, {sTK}, 0x1ffff
        s_add_u32 {sTV}, {sTV}, {sSTR}
        s_and_b32 {sTV}, {sTV}, 0x1ffff""")
        s.iss_end()
        a.lab("F_TOUCH")
        a(f"""s_cmp_ge_u32 {sW}, 2
        s_cbranch_scc1 L_tw
        s_lshl_b32 {sT0}, {sBIT}, 7
        s_add_u32 {sT0}, {sT0}, {sCNT}
        buffer_load_dword v{vT}, v{vT+1}, {srd(SX)}, {sT0} offen
        s_setpc_b64 {LR1}""")
        a.lab("L_tw")
        a(f"""s_lshl_b32 {sT0}, {sBIT}, 19
        s_add_u32 {sT0}, {sT0}, {sCNT}
        buffer_load_dword v{vT}, v{vT+1}, {srd(SWQ)}, {sT0} offen
        s_setpc_b64 {LR1}""")
        a.lab("F_PF")
        fp = s.o.get("fpf", "")
        a(f"""s_lshl_b32 {sT0}, {sG}, 3
        s_add_u32 {sT0}, {sT0}, {sHS}
        s_add_u32 {sT0}, {sT0}, {sBIT}
        s_xor_b32 {sT0}, {sT0}, {sPX}
        s_lshl_b32 {sT1}, {sMB}, 6
        s_add_u32 {sT0}, {sT0}, {sT1}
        s_lshl_b32 {sT0}, {sT0}, 17
        s_and_b32 {sT1}, {sW}, 2
        s_add_u32 {sT1}, {sT1}, {sNEED}
        s_sub_u32 {sT1}, {sT1}, 1
        s_mul_i32 {sT1}, {sT1}, {sSTR}
        s_lshr_b32 {sA}, {sWG}, 4
        s_lshl_b32 {sA}, {sA}, 13
        s_add_u32 {sT1}, {sT1}, {sA}
        s_and_b32 {sT1}, {sT1}, 0x1ffff
        s_add_u32 {sT0}, {sT0}, {sT1}
        s_and_b32 {sT1}, {sW}, 1
        s_cselect_b32 {sT1}, {sXOR}, 0
        s_xor_b32 {sT0}, {sT0}, {sT1}
        v_lshlrev_b32 v{vT+1}, 7, v0
        s_cmp_ge_u32 {sW}, 2
        s_cbranch_scc1 L_pfk
        buffer_load_dword v{vT}, v{vT+1}, {srd(SV)}, {sT0} offen {fp}
        s_setpc_b64 {LR1}""")
        a.lab("L_pfk")
        a(f"buffer_load_dword v{vT}, v{vT+1}, {srd(SK)}, {sT0} offen {fp}\ns_setpc_b64 {LR1}")
        a.lab("F_FPRE")
        a(f"""s_cmp_lg_u32 {sW}, 0
        s_cbranch_scc1 F_RET1
        v_and_b32 v{vT+1}, 15, v0
        v_lshlrev_b32 v{vT+1}, 2, v{vT+1}
        buffer_load_dword v{vT}, v{vT+1}, {srd(SWS)}, {sFLG} offen sc1""")
        a.lab("F_RET1")
        a(f"s_setpc_b64 {LR1}")
        a.lab("F_FCHK")
        a(f"s_cmp_lg_u32 {sW}, 0\ns_cbranch_scc1 F_RET1\ns_mov_b32 {sCNT}, 0x40000")
        a.lab("L_fchk")
        a(f"""v_and_b32 v{vT+2}, {sBIT}, v{vT}
        v_cmp_ne_u32 vcc, 0, v{vT+2}
        s_nop 1
        s_and_b32 {sT0}, vcc_lo, {sNEED}
        s_cmp_eq_u32 {sT0}, {sNEED}
        s_cbranch_scc1 F_RET1
        s_sub_u32 {sCNT}, {sCNT}, 1
        s_cmp_eq_u32 {sCNT}, 0
        s_cbranch_scc1 F_RET1
        s_sleep {s.o.get('slp', 2)}
        buffer_load_dword v{vT}, v{vT+1}, {srd(SWS)}, {sFLG} offen sc1
        s_waitcnt vmcnt(0)
        s_branch L_fchk""")
        a.lab("F_SIG")
        a(f"""s_cmp_lg_u32 {sW}, 0
        s_cbranch_scc1 F_RET1
        s_lshl_b32 {sT0}, {sG}, 3
        s_add_u32 {sT0}, {sT0}, {sHS}
        s_lshl_b32 {sT0}, {sT0}, 2
        v_mov_b32 v{vT+3}, {sT0}
        v_mov_b32 v{vT+2}, {sSIG}
        s_mov_b64 exec, 1
        buffer_store_dword v{vT+2}, v{vT+3}, {srd(SWS)}, {sFLG} offen sc1
        s_mov_b64 exec, -1
        s_setpc_b64 {LR1}""")
    def need_block(s, b):
        if b == "partner":
            s.a(f"""s_mov_b32 {sBIT}, 4
            s_lshl_b32 {sT0}, {sG}, 3
            s_xor_b32 {sT1}, {sHS}, 4
            s_add_u32 {sT0}, {sT0}, {sT1}
            s_lshl_b32 {sNEED}, 1, {sT0}""")
            return
        r, remote = b
        s.a(f"s_mov_b32 {sBIT}, {1 << (r >> 1)}")
        if remote: s.a(f"s_xor_b32 {sT0}, {sHH4}, 4\ns_lshl_b32 {sNEED}, {hex(0xF << ((r & 1)*8))}, {sT0}")
        else: s.a(f"s_lshl_b32 {sNEED}, {hex(0xF << ((r & 1)*8))}, {sHH4}")
    SZ = {"F_IQ": 10, "F_IO": 10, "F_IT": 8, "F_IA0": 8, "F_IAM": 8, "F_IAL": 8}
    def lstart(s, nxt):
        s.vq = []; s.nu = nxt
    def room(s, n):
        if sum(k for _, k in s.vq) + n > 58:
            keep = []; tot = 0
            for e in reversed(s.vq):
                if tot + e[1] + n > 58: break
                keep.insert(0, e); tot += e[1]
            s.a(f"s_waitcnt vmcnt({tot})"); s.vq = keep
    def I(s, f):
        s.room(s.SZ[f]); s.call(f); s.vq.append((s.nu, s.SZ[f])); s.nu += 1
    def extra(s, n): s.vq.append((None, n))
    def wcount(s, u):
        idx = [i for i, (t, n) in enumerate(s.vq) if t == u]
        if not idx: return None
        return idx[0], sum(n for (t, n) in s.vq[idx[0] + 1:])
    def WB(s, u=None, mid=None):
        if u is None: u = s.nu - 3
        r = s.wcount(u)
        if r is not None:
            s.W(min(r[1], 63)); s.vq = s.vq[r[0] + 1:]
        if mid: mid()
        s.B()
    def unit(s, f): s.I(f); s.WB()
    def lrun(s, f, cur, end):
        n = s.SZ[f]
        while cur < end and s.vq != [(s.nu - 2, n), (s.nu - 1, n)] and not (len(s.vq) == 2 and s.vq[1] == (s.nu - 1, n) and s.vq[0][0] == s.nu - 2):
            s.unit(f); cur += 1
        if end - cur == 1: s.unit(f)
        elif cur < end:
            a = s.a; L = a.new("L_ll"); a.lab(L)
            s.call(f); s.W(2 * n); s.B()
            a(f"s_cmp_lt_u32 {sLI}, {end}\ns_cbranch_scc1 {L}")
            s.nu += end - cur; s.vq = [(s.nu - 2, n), (s.nu - 1, n)]
    def chk2(s, f1, f2, b):
        s.call("F_FPRE"); s.unit(f1); s.I(f2)
        def mid(): s.need_block(b); s.call("F_FCHK")
        assert len(s.vq) == 3 and s.vq[0][0] == s.nu - 3, s.vq
        s.WB(mid=mid)
    def ldrain(s):
        s.WB(s.nu - 2); s.WB(s.nu - 1)
    def init_flags(s):
        a = s.a; L = a.new("L_if")
        a(f"s_mov_b32 {sSIG}, 0"); s.call("F_SIG")
        a(f"""s_cmp_lg_u32 {sW}, 0
        s_cbranch_scc1 {L}
        s_waitcnt vmcnt(0)
        s_lshl_b32 {sT0}, {sPM}, 4
        v_mov_b32 v{vT+3}, {sT0}
        v_mov_b32 v{vT+2}, 1
        s_mov_b64 exec, 1
        buffer_atomic_add v{vT+2}, v{vT+3}, {srd(SDBG)}, 0 offen sc1
        s_mov_b64 exec, -1""")
        a.lab(L)
    def att_loader_first(s, cur, end, f="F_IAM"):
        a = s.a; L = a.new("L_ll"); X = a.new("L_lx"); R = a.new("L_lr"); S = a.new("L_ls"); D = a.new("L_ld")
        n = s.SZ[f]
        assert s.vq == [(s.nu - 2, n), (s.nu - 1, n)] and cur <= 4 and end >= 13, s.vq
        a.lab(L)
        a(f"s_cmp_eq_u32 {sLI}, {sCHK}\ns_cbranch_scc1 {X}")
        s.call(f); s.W(2 * n)
        a.lab(R)
        s.B()
        a(f"s_cmp_lt_u32 {sLI}, {end}\ns_cbranch_scc1 {L}\ns_branch {D}")
        a.lab(X)
        a(f"s_lshl_b32 {sT2}, {sPM}, 4\nv_mov_b32 v{vT+1}, {sT2}\ns_mov_b32 {sCNT}, 0x40000\ns_cmp_lg_u32 {sW}, 0\ns_cbranch_scc1 {S}")
        a(f"buffer_load_dword v{vT}, v{vT+1}, {srd(SDBG)}, 0 offen sc1")
        a.lab(S)
        s.call(f); s.W(2 * n); s.B()
        s.call(f); s.W(2 * n)
        a(f"s_cmp_lg_u32 {sW}, 0\ns_cbranch_scc1 {R}")
        P = a.new("L_lp"); a.lab(P)
        a(f"""v_readfirstlane_b32 {sT0}, v{vT}
        s_cmp_ge_u32 {sT0}, 16
        s_cbranch_scc1 {R}
        s_sub_u32 {sCNT}, {sCNT}, 1
        s_cmp_eq_u32 {sCNT}, 0
        s_cbranch_scc1 {R}
        s_sleep 8
        buffer_load_dword v{vT}, v{vT+1}, {srd(SDBG)}, 0 offen sc1
        s_waitcnt vmcnt(0)
        s_branch {P}""")
        a.lab(D)
        s.nu += end - cur; s.vq = [(s.nu - 2, n), (s.nu - 1, n)]

    RPR = list(range(64, 208, 4)) + list(range(8, 56, 4))
    def preload_set(s):
        s.head(sT0, 0)
        s.a(f"""s_lshl_b32 {sT1}, {sMB}, 6
        s_add_u32 {sT0}, {sT0}, {sT1}
        s_lshl_b32 {sKB}, {sT0}, 17
        s_lshr_b32 {sTK}, {sWG}, 4
        s_lshl_b32 {sTK}, {sTK}, 13""")
    def preload(s, k, u):
        a = s.a; fk = s.o.get("fk", "nt")
        for pos, (sr, vo, d) in enumerate(((SV, vLV, u - 1), (SK, vLK, u + 1) if u < 15 else (SV, vLV, 15))):
            a(f"""s_mul_i32 {sT0}, {sSTR}, {d}
            s_add_u32 {sT0}, {sT0}, {sTK}
            s_and_b32 {sT0}, {sT0}, 0x1ffff
            s_add_u32 {sA}, {sKB}, {sT0}
            s_xor_b32 {sB0}, {sA}, {sXOR}""")
            for it in range(2):
                for hf in range(2):
                    r = s.RPR[k*8 + pos*4 + it*2 + hf]
                    a(f"buffer_load_dwordx4 {vr(r)}, v{vo}, {srd(sr)}, {sA if it == 0 else sB0} offen offset:{hf*128} {fk}")
        s.extra(8)
    def dump(s, k, part):
        a = s.a; n1 = s.o.get("dsplit", 5)
        if part == 0:
            s.trace()
            a(f"s_add_u32 {sM0}, {sLS}, {sW1K}\nv_add_u32 v{vA0}, {sM0}, v{vLO}")
        for j in (range(n1) if part == 0 else range(n1, 8)):
            a(f"ds_write_b128 v{vA0}, {vr(s.RPR[k*8 + j])} offset:{(j >> 2)*16384 + ((j >> 1) & 1)*8192 + (j & 1)*1024}")
        if part == 0: s.call("F_SKIP"); s.nu += 1; s.pendd = k
        else: s.pendd = None; s.pendw = True
    pendd = None; pendw = False
    def AU(s, u, units, f=None):
        if s.pendw: s.a("s_waitcnt lgkmcnt(0)"); s.pendw = False
        if u in units:
            if s.pendd is not None: s.dump(s.pendd, 1)
            s.dump(units.index(u), 0)
        else:
            s.I(f or ("F_IAM" if u < 15 else "F_IAL"))
            if s.pendd is not None: s.dump(s.pendd, 1)
    def att_mixed(s, cur, end, units):
        for u in range(cur, end):
            s.AU(u, units); s.WB()
        assert s.pendd is None
        if s.pendw: s.a("s_waitcnt lgkmcnt(0)"); s.pendw = False

    def xoff(s, dst, tmp, tmp2, perm):
        a = s.a
        a(f"""v_bfe_u32 v{dst}, v0, 3, 1
        s_mul_i32 {sT0}, {sW}, 6
        v_add_u32 v{dst}, {sT0}, v{dst}
        v_lshlrev_b32 v{dst}, 10, v{dst}
        v_and_b32 v{tmp}, 7, v0
        v_lshl_add_u32 v{dst}, v{tmp}, 6, v{dst}""")
        if perm: a(f"v_lshrrev_b32 v{tmp2}, 5, v0\nv_bfe_u32 v{tmp}, v0, 4, 1\nv_lshl_or_b32 v{tmp2}, v{tmp}, 1, v{tmp2}")
        else: a(f"v_lshrrev_b32 v{tmp2}, 4, v0")
        a(f"""v_lshrrev_b32 v{tmp}, 2, v0
        v_sub_u32 v{tmp}, 0, v{tmp}
        v_and_b32 v{tmp}, 3, v{tmp}
        v_xor_b32 v{tmp}, v{tmp}, v{tmp2}
        v_lshl_add_u32 v{dst}, v{tmp}, 4, v{dst}""")
    def gemm_addr_func(s, name, tail):
        a = s.a; a.lab(name)
        s.xoff(vA0, vM, vM + 1, False)
        sh = 10 if tail else 11
        a(f"""v_lshlrev_b32 v{vA1}, {sh}, v{vM+1}
        v_bfe_u32 v{vM}, v0, 2, 2
        v_lshl_add_u32 v{vA1}, v{vM}, 6, v{vA1}
        v_and_b32 v{vM}, 1, v{vM+1}
        v_lshl_add_u32 v{vA1}, v{vM}, 5, v{vA1}
        v_and_b32 v{vM}, 3, v0
        v_lshl_add_u32 v{vA1}, v{vM}, 3, v{vA1}
        v_add_u32 v{vA1}, 24576, v{vA1}
        v_xor_b32 v{vA2}, 32, v{vA1}
        s_mov_b32 {sCS}, 0
        s_setpc_b64 {LR1}""")
    def adv_scalar(s):
        return [f"s_add_u32 {sCS}, {sCS}, 1", f"s_and_b32 {sCS}, {sCS}, 3", f"s_cselect_b32 {sDL}, {sT3}, {sT2}"]
    def adv_consts(s): s.a(f"s_mov_b32 {sT3}, {SLOT}\ns_mov_b32 {sT2}, {-3*SLOT & 0xffffffff}")
    def adv_vec(s): return [f"v_add_u32 v{r}, {sDL}, v{r}" for r in (vA0, vA1, vA2)]

    def gemm_func(s, name, tail, hook):
        a = s.a; q = LQ(a)
        NT = 4 if tail else 8; NF = 2 * NT
        R = 8; LA = 4 if tail else s.o.get("gla", 5)
        vX = vS
        wreg = [88, 92, 96, 100, 104, 108, 36, 40]
        kso = 4096 if tail else 8192
        def rdW(f, sec):
            ks, nt = (f % NF) // NT, f % NT
            r = wreg[f % R]; ad = vA1 if nt % 2 == 0 else vA2
            return lambda: q.rd(f"ds_read_b64_tr_b16 {vr(r + 2*sec, 2)}, v{ad} offset:{ks*kso + (nt>>1)*512 + sec*256}", ("W", f % NF))
        def rdX(ks, mt):
            return lambda: q.rd(f"ds_read_b128 {vr(vX + ks*12 + mt*4)}, v{vA0} offset:{mt*2048 + ks*512}", ("X", ks))
        def ins(t): return lambda: a(t)
        def grp(f, fill, zero=False):
            ks, nt = f // NT, f % NT
            q.need(("W", f), ("X", ks))
            for mt in range(3):
                a(mfma(acc(nt, mt), wreg[f % R], vX + ks*12 + mt*4, "0" if (zero and ks == 0) else acc(nt, mt)))
                for x in fill[mt]: x()
        cut = NF - LA + 1
        def part1(zero):
            sc = s.adv_scalar() + [f"s_add_u32 {sCI}, {sCI}, 1"]
            for f in range(cut):
                fill = [[rdW(f + LA, 0)], [rdW(f + LA, 1)], []]
                if f < 3: fill[2].append(rdX(1, f))
                if tail:
                    if f < 2: fill[0].append(ins(sc[2*f])); fill[1].append(ins(sc[2*f+1]))
                elif 3 <= f < 7: fill[2].append(ins(sc[f - 3]))
                if f == cut - 2: fill = [[rdW(f + LA, 0), rdW(f + LA, 1)], [], []]
                if f == cut - 1:
                    av = s.adv_vec()
                    def drain(): a("s_waitcnt lgkmcnt(0)"); q.q = []
                    fill = [[ins(av[0]), ins(av[1])], [ins(av[2]), ins(f"s_cmp_lg_u32 {sCI}, {sSTOP}")], [drain]]
                grp(f, fill, zero)
        def part2(reads):
            rl = [rdX(0, mt) for mt in range(3)] + [rdW(f, sec) for f in range(LA) for sec in range(2)]
            ngap = 3 * (NF - cut); extra = len(rl) - ngap
            it = iter(rl); gi = 0
            for f in range(cut, NF):
                fill = [[], [], []]
                if reads:
                    for mt in range(3):
                        fill[mt] = [next(it)] + ([next(it)] if gi < extra else []); gi += 1
                grp(f, fill)
        L = a.new("L_gl"); Bk = a.new("L_gb"); ST = a.new("L_gs"); F = a.new("L_gf")
        a.lab(name)
        s.stamp()
        for mt in range(3): rdX(0, mt)()
        for f in range(LA): rdW(f, 0)(); rdW(f, 1)()
        s.adv_consts()
        a(f"s_mov_b32 {sCI}, 0")
        q0 = list(q.q)
        if tail:
            a(f"s_branch {name}_P1")
            n0 = len(a.l); part1(False); del a.l[n0:]
            q1 = list(q.q)
        else:
            part1(True)
            q1 = list(q.q)
            a(f"s_cbranch_scc0 {ST}")
        a.l.append(".p2align 6") if s.o.get("al") else None
        a.lab(L)
        a("s_barrier")
        a.lab(Bk)
        part2(True)
        assert q.q == q0, (q.q, q0)
        a.lab(name + "_P1")
        part1(False)
        assert q.q == q1
        a(f"s_cbranch_scc1 {L}")
        a.lab(ST)
        a(f"s_cmp_eq_u32 {sCI}, {sCN}\ns_cbranch_scc1 {F}")
        hook()
        a(f"s_mov_b32 {sSTOP}, {sSTOP2}\ns_mov_b32 {sSTOP2}, {sCN}\ns_branch {Bk}")
        if not tail:
            a.lab(name + "C")
            s.stamp()
            sv = q.q; q.q = []
            for mt in range(3): rdX(0, mt)()
            for f in range(LA): rdW(f, 0)(); rdW(f, 1)()
            q.q = sv
            s.adv_consts()
            a(f"s_mov_b32 {sCI}, 0\ns_branch {name}_P1")
        a.lab(F)
        part2(False)
        a("s_nop 6")
        s.stamp()
        a(f"s_setpc_b64 {LR2}")

    def pack_mt(s, mt, npair, scale, dst):
        a = s.a
        for pr in range(npair):
            d = dst(mt, pr); x = acc(2 * pr, mt); y = acc(2 * pr + 1, mt)
            if scale is not None:
                for b in (x, x + 2, y, y + 2): a(f"v_pk_mul_f32 {vr(b, 2)}, {vr(b, 2)}, {scale}")
            a(f"v_cvt_pk_bf16_f32 v{d}, v{x}, v{x+1}\nv_cvt_pk_bf16_f32 v{d+2}, v{y}, v{y+1}")
            a(f"v_cvt_pk_bf16_f32 v{d+1}, v{x+2}, v{x+3}\nv_cvt_pk_bf16_f32 v{d+3}, v{y+2}, v{y+3}")
            if pr:
                e = dst(mt, pr - 1); a(f"v_permlane16_swap_b32 v{e}, v{e+2}\nv_permlane16_swap_b32 v{e+1}, v{e+3}")
        e = dst(mt, npair - 1)
        a(("s_nop 0\n" if npair > 1 else "s_nop 1\n") + f"v_permlane16_swap_b32 v{e}, v{e+2}\nv_permlane16_swap_b32 v{e+1}, v{e+3}")

    def misc_funcs(s):
        a = s.a
        a.lab("F_PACKQ")
        a(f"v_mov_b32 v{vM}, {f32(QSCALE)}\nv_mov_b32 v{vM+1}, {f32(QSCALE)}")
        for mt in range(3): s.pack_mt(mt, 4, vr(vM, 2), qreg)
        a(f"s_setpc_b64 {LR1}")
        for mt in range(3):
            a.lab(f"F_EPI{mt}")
            if mt == 0:
                s.xoff(vA0, vM, vM + 1, True)
                a(f"""s_lshl_b32 {sT0}, {sSEL}, 1
                s_add_u32 {sT0}, {sT0}, {sG}
                s_lshl_b32 {sT0}, {sT0}, 3
                s_add_u32 {sT0}, {sT0}, {sHS}
                s_lshl_b32 {sT1}, {sPM}, 5
                s_add_u32 {sT0}, {sT0}, {sT1}
                s_mul_i32 {sCS}, {sT0}, 49152
                s_add_u32 {sCS}, {sCS}, {WS_O + s.o.get("oredir", 0)}""")
                if s.o.get("osmall"): a(f"s_mul_i32 {sCS}, {sWG}, 49152\ns_add_u32 {sCS}, {sCS}, 0x6000000")
            a(f"v_rcp_f32 v{vM}, v{vL+mt*4}\ns_add_u32 {sDL}, {sCS}, 24576\nv_mov_b32 v{vM+1}, v{vM}")
            s.pack_mt(mt, 4, vr(vM, 2), qreg)
            for ks in range(4):
                a(f"buffer_store_dwordx4 {vr(qreg(mt, ks))}, v{vA0}, {srd(SWS)}, {sCS if ks < 2 else sDL} offen offset:{(ks & 1)*512} {s.o.get('fo', 'sc1')}")
            a(f"s_add_u32 {sCS}, {sCS}, 2048\ns_setpc_b64 {LR1}")
        a.lab("F_ASET")
        a(f"""v_lshrrev_b32 v{vM+2}, 4, v0
        s_lshr_b32 {sT0}, {sW}, 1
        s_lshl_b32 {sT0}, {sT0}, 13
        v_bfe_u32 v{vM}, v0, 3, 1
        v_lshrrev_b32 v{vM+1}, 1, v{vM+2}
        v_and_b32 v{vM+3}, 1, v{vM+2}
        v_lshl_or_b32 v{vA0}, v{vM+3}, 1, v{vM+1}
        v_xor_b32 v{vA0}, v{vA0}, v{vM}
        v_lshlrev_b32 v{vA0}, 4, v{vA0}
        v_lshl_add_u32 v{vA0}, v{vM}, 11, v{vA0}
        v_and_b32 v{vM}, 7, v0
        v_lshl_add_u32 v{vA0}, v{vM}, 6, v{vA0}
        v_add_u32 v{vA0}, {sT0}, v{vA0}
        v_lshlrev_b32 v{vA1}, 11, v{vM+1}
        v_bfe_u32 v{vM}, v0, 2, 3
        v_lshl_add_u32 v{vA1}, v{vM}, 6, v{vA1}
        v_lshl_add_u32 v{vA1}, v{vM+3}, 5, v{vA1}
        v_and_b32 v{vM}, 3, v0
        v_lshl_add_u32 v{vA1}, v{vM}, 3, v{vA1}
        v_add_u32 v{vA1}, {sT0}, v{vA1}
        v_xor_b32 v{vA2}, 32, v{vA1}
        s_mov_b32 {sCS}, 0""")
        for r in range(4): a(f"v_mov_b32 v{vONES+r}, 0x3f803f80")
        a(f"s_setpc_b64 {LR1}")

    def pstore(s, i0, i1):
        a = s.a
        if i0 == 0:
            a(f"""s_mul_i32 {sCS}, {sWG}, 49152
            s_mul_i32 {sT1}, {sW}, 12288
            s_add_u32 {sCS}, {sCS}, {sT1}
            s_add_u32 {sCS}, {sCS}, {WS_P}
            v_lshlrev_b32 v{vA0}, 4, v0""")
        for i in range(i0, i1):
            if i % 4 == 0 and i: a(f"s_add_u32 {sCS}, {sCS}, 4096")
            a(f"buffer_store_dwordx4 {vr(vACC + 48 + 4*i)}, v{vA0}, {srd(SWS)}, {sCS} offen offset:{(i % 4)*1024} sc1")

    def att_func(s):
        a = s.a; q = LQ(a)
        def S(par, qt, kt=0): return vS + par * 24 + qt * 8 + kt * 4
        ring = lambda f: vRING + (f % 4) * 4
        def rds(f, kb=16384, vb=0):
            f %= 16
            if f < 8:
                return [lambda: q.rd(f"ds_read_b128 {vr(ring(f))}, v{vA0} offset:{kb + (f >> 2)*4096 + (f & 3)*512}", f)]
            dt = f - 8; ad = vA1 if dt % 2 == 0 else vA2
            return [lambda sec=sec: q.rd(f"ds_read_b64_tr_b16 {vr(ring(f) + 2*sec, 2)}, v{ad} offset:{vb + sec*4096 + (dt >> 1)*512}", f) for sec in range(2)]
        def ins(t): return lambda: a(t)
        def qk(par, f, c0, fill):
            kt, ks = f >> 2, f & 3
            q.need(f)
            for qt in range(3):
                d = S(par, qt, kt)
                a(mfma(d, ring(f), qreg(qt, ks), (c0(qt) if ks == 0 else d)))
                for x in fill[qt]: x()
        def rowmax(par, qt, dst, tmp):
            b = S(par, qt)
            a(f"v_max3_f32 v{dst}, v{b}, v{b+1}, v{b+2}\nv_max3_f32 v{dst}, v{dst}, v{b+3}, v{b+4}\nv_max3_f32 v{dst}, v{dst}, v{b+5}, v{b+6}\nv_max_f32 v{dst}, v{dst}, v{b+7}")
            a(f"v_mov_b32 v{tmp}, v{dst}\ns_nop 1\nv_permlane16_swap_b32 v{dst}, v{tmp}\nv_max_f32 v{dst}, v{dst}, v{tmp}")
            a(f"v_mov_b32 v{tmp}, v{dst}\ns_nop 1\nv_permlane32_swap_b32 v{dst}, v{tmp}\nv_max_f32 v{dst}, v{dst}, v{tmp}")
        a.lab("F_ATT")
        s.stamp()
        for f in range(3):
            for x in rds(f, kb=0): x()
        s.adv_consts()
        zero = [f"v_pk_mov_b32 {vr(r, 2)}, 0, 0" for r in list(range(vL, vL + 12, 2)) + list(range(vACC, vACC + 96, 2))]
        for z in zero[:14]: a(z)
        zi = iter(zero[14:])
        for f in range(8):
            r = rds(f + 3, kb=0) if f + 3 < 8 else rds(f + 3 - 8)
            if f + 3 >= 8:
                pass
            fill = [r + [ins(next(zi))], [ins(next(zi)), ins(next(zi))], [ins(next(zi)), ins(next(zi))]]
            qk(0, f, lambda qt: "0", fill)
        assert next(zi, None) is None
        a("s_nop 5")
        for qt in range(3):
            rowmax(0, qt, vM + qt, vM + 4)
            for r in range(8): a(f"v_sub_f32 v{S(0,qt)+r}, v{S(0,qt)+r}, v{vM+qt}")
            for r in range(4): a(f"v_sub_f32 v{vCI+qt*4+r}, 0, v{vM+qt}")
        a(f"s_mov_b32 {sCI}, 0")
        q0 = list(q.q)
        def ex(par, i): return lambda: a(f"v_exp_f32 v{vS+par*24+i}, v{vS+par*24+i}")
        def cv(par, pr):
            qt, k = pr // 4, pr % 4; b = S(par, qt)
            return lambda: a(f"v_cvt_pk_bf16_f32 v{b+k}, v{b+2*k}, v{b+2*k+1}")
        def pv(par, f, fill):
            q.need(f)
            for qt in range(3):
                a(mfma(acc(f - 8, qt), ring(f), S(par, qt), acc(f - 8, qt)))
                for x in fill[qt]: x()
        def ones(par, qt): a(mfma(vL + qt*4, vONES, S(par, qt), vL + qt*4))
        rare = []
        def step(par):
            nx = par ^ 1
            av = s.adv_vec()
            for f in range(8):
                fill = []
                r = [[y] for y in rds(f + 3)]
                if f == 5: r = []
                if f == 6: r = [rds(8), [rds(9)[0]], [rds(9)[1]]]
                def drain(): a(f"s_waitcnt vmcnt({8 if par == 0 else 0}) lgkmcnt(0)"); q.q = []
                for qt in range(3):
                    i = f * 3 + qt; x = []
                    if qt < len(r): x += r[qt]
                    x.append(ex(par, i))
                    if i >= 2 and i % 2 == 0: x.append(cv(par, i // 2 - 1))
                    if f == 5: x.append(ins(av[qt]))
                    if f == 5 and qt == 2: x += [drain, ins("s_barrier")]
                    fill.append(x)
                qk(nx, f, lambda qt: vCI + qt*4, fill)
            ones(par, 0); cv(par, 11)(); ones(par, 1); a("s_nop 0"); ones(par, 2)
            regs = [S(nx, qt, kt) + r for kt in range(2) for qt in range(3) for r in range(4)]
            m0_, m1_ = vM, vM + 1
            mx = [f"v_max3_f32 v{m0_}, v{regs[0]}, v{regs[1]}, v{regs[2]}", f"v_max3_f32 v{m1_}, v{regs[3]}, v{regs[4]}, v{regs[5]}"]
            rest = regs[6:]
            for i in range(0, len(rest), 2):
                m = m0_ if (i // 2) % 2 == 0 else m1_
                mx.append(f"v_max3_f32 v{m}, v{m}, v{rest[i]}, v{rest[i+1]}")
            mx += [f"v_max_f32 v{m0_}, v{m0_}, v{m1_}", f"v_cmp_lt_f32 vcc, {f32(THR)}, v{m0_}"]
            mx = s.adv_scalar() + mx
            mx += [f"s_cmp_eq_u32 {sCI}, 7"] if par == 0 else [f"s_add_u32 {sCI}, {sCI}, 1"]
            mi = iter(mx)
            def nm():
                x = next(mi, None)
                if x: a(x)
            for f in range(8, 16):
                r = rds(f + 3)
                fill = [[r[0], nm], ([r[1]] if len(r) > 1 else [nm]) + ([nm] if f >= 12 else []), [nm]]
                pv(par, f, fill)
            assert next(mi, None) is None
            R_ = a.new("L_rare"); Bk = a.new("L_back")
            a(f"s_cbranch_vccnz {R_}")
            a.lab(Bk)
            rare.append((R_, Bk, nx))
        L = a.new("L_al"); F = a.new("L_af")
        for x in s.adv_scalar(): a(x)
        a.lab(L)
        step(0)
        assert q.q == q0, (q.q, q0)
        a(f"s_cbranch_scc1 {F}")
        step(1)
        assert q.q == q0
        a(f"s_branch {L}")
        for (R_, Bk, nx) in rare:
            a.lab(R_)
            a("s_nop 7")
            for qt in range(3):
                rowmax(nx, qt, vM + qt, vM + 4)
                a(f"v_max_f32 v{vM+qt}, 0, v{vM+qt}\nv_sub_f32 v{vM+5}, 0, v{vM+qt}\nv_exp_f32 v{vM+5}, v{vM+5}")
                for r in range(8): a(f"v_sub_f32 v{S(nx,qt)+r}, v{S(nx,qt)+r}, v{vM+qt}")
                for r in range(4): a(f"v_sub_f32 v{vCI+qt*4+r}, v{vCI+qt*4+r}, v{vM+qt}")
                for r in range(4): a(f"v_mul_f32 v{vL+qt*4+r}, v{vL+qt*4+r}, v{vM+5}")
                for dt in range(8):
                    for r in range(4): a(f"v_mul_f32 v{acc(dt,qt)+r}, v{acc(dt,qt)+r}, v{vM+5}")
            a(f"s_nop 1\ns_branch {Bk}")
        a.lab(F)
        for f in range(8, 11):
            for x in rds(f, vb=16384): x()
        for i in range(24):
            ex(1, i)()
            if i >= 2 and i % 2 == 0: cv(1, i // 2 - 1)()
        ones(1, 0); cv(1, 11)(); ones(1, 1); a("s_nop 0"); ones(1, 2)
        for f in range(8, 16):
            r = rds(f + 3, vb=16384) if f + 3 < 16 else [lambda: None, lambda: None]
            pv(1, f, [[r[0]], [r[1]], []])
        a("s_nop 6")
        s.stamp()
        a(f"s_setpc_b64 {LR2}")

    def cgemm(s, n, stop, sig=0, f="F_GEMM"):
        s.a(f"s_mov_b32 {sCN}, {n}\ns_mov_b32 {sSTOP}, {stop}\ns_mov_b32 {sSTOP2}, {2 if stop == 1 else n}\ns_mov_b32 {sSIG}, {sig}")
        s.prio(False); s.call(f, LR2); s.prio(True)
    def catt(s, sel):
        s.a(f"s_mov_b32 {sSEL}, {sel}"); s.prio(False); s.call("F_ATT", LR2); s.prio(True)
    def epi_in(s, f, sig):
        m = s.o.get("epi", 1)
        def E(i): s.call(f"F_EPI{i}"); s.extra(4)
        if m == 1:
            s.I(f); E(0); E(1); E(2); s.B()
            s.I(f); s.B()
            s.I(f); s.W(20); s.vq = s.vq[-2:]; s.B()
        elif m == 2:
            E(0); E(1); E(2); s.I(f); s.B()
            s.I(f); s.W(20); s.vq = s.vq[-2:]; s.B()
            s.a(f"s_mov_b32 {sSIG}, {sig}"); s.call("F_SIG")
            s.unit(f)
            return
        elif m == 3:
            E(0); s.I(f); E(1); s.B()
            E(2); s.I(f); s.B()
            s.I(f); s.W(20); s.vq = s.vq[-2:]; s.B()
        s.a(f"s_mov_b32 {sSIG}, {sig}"); s.call("F_SIG")
    def prio(s, loader):
        p = s.o.get("lprio"); c = s.o.get("cprio")
        if p is None and c is None: return
        s.a(f"s_setprio {(p or 0) if loader else (c or 0)}")

    def touch_w(s, kind):
        a = s.a
        a(f"s_lshr_b32 {sT0}, {sWG}, 4")
        if kind == "o16":
            a(f"s_and_b32 {sT1}, {sT0}, 8\ns_add_u32 {sT0}, {sT0}, {sT1}\ns_lshl_b32 {sT1}, {sHH4}, 1\ns_add_u32 {sT0}, {sT0}, {sT1}\ns_lshl_b32 {sA}, {sW}, 15"); n = 2
        elif kind == "o8":
            a(f"s_lshr_b32 {sA}, {sT0}, 3\ns_lshl_b32 {sA}, {sA}, 2\ns_add_u32 {sA}, {sA}, {sW}\ns_lshl_b32 {sA}, {sA}, 14")
            a(f"s_and_b32 {sT0}, {sT0}, 7\ns_lshl_b32 {sT1}, {sHH4}, 1\ns_add_u32 {sT0}, {sT0}, {sT1}\ns_add_u32 {sT0}, {sT0}, 32"); n = 1
        else:
            a(f"s_add_u32 {sT0}, {sT0}, 48\ns_lshl_b32 {sA}, {sW}, 15"); n = 2
        a(f"""s_lshl_b32 {sT0}, {sT0}, 17
        s_lshl_b32 {sT1}, {sPX}, 18
        s_xor_b32 {sT0}, {sT0}, {sT1}
        s_add_u32 {sA}, {sA}, {sT0}
        v_lshrrev_b32 v{vT+3}, 3, v0
        v_lshlrev_b32 v{vT+3}, 11, v{vT+3}""")
        if kind == "tail":
            a(f"s_and_b32 {sT0}, {sCOL}, 128\nv_and_b32 v{vT+2}, 7, v0\nv_lshl_add_u32 v{vT+3}, v{vT+2}, 8, v{vT+3}")
        else:
            a(f"""s_and_b32 {sT0}, {sCOL}, 256
            s_xor_b32 {sT0}, {sT0}, 256
            v_bfe_u32 v{vT+2}, v0, 1, 2
            v_lshl_add_u32 v{vT+3}, v{vT+2}, 9, v{vT+3}
            v_and_b32 v{vT+2}, 1, v0
            v_lshl_add_u32 v{vT+3}, v{vT+2}, 7, v{vT+3}""")
        a(f"s_add_u32 {sA}, {sA}, {sT0}")
        for i in range(n):
            if i: a(f"s_add_u32 {sA}, {sA}, 16384")
            a(f"buffer_load_dword v{vT+2}, v{vT+3}, {srd(SWO)}, {sA} offen")
        s.extra(n)
    def touch_own_o(s, sel):
        a = s.a
        a(f"""s_lshl_b32 {sT0}, {sG}, 3
        s_add_u32 {sT0}, {sT0}, {sHS}
        s_add_u32 {sT0}, {sT0}, {16*sel}
        s_lshl_b32 {sT1}, {sPM}, 5
        s_add_u32 {sT0}, {sT0}, {sT1}
        s_mul_i32 {sA}, {sT0}, 49152
        s_add_u32 {sA}, {sA}, {WS_O}
        s_mul_i32 {sT0}, {sW}, 12288
        s_add_u32 {sA}, {sA}, {sT0}
        v_lshlrev_b32 v{vT+3}, 7, v0
        buffer_load_dword v{vT+2}, v{vT+3}, {srd(SWS)}, {sA} offen sc1
        s_add_u32 {sA}, {sA}, 4096
        buffer_load_dword v{vT+2}, v{vT+3}, {srd(SWS)}, {sA} offen sc1""")
        s.extra(2)
    def lrun_x(s, f, cur, end, ev):
        for u in sorted(ev):
            assert cur <= u < end
            s.lrun(f, cur, u); s.I(f); ev[u](); s.WB(); cur = u + 1
        s.lrun(f, cur, end)

    def programs(s):
        a = s.a
        PH = s.o.get("phook", 11)
        a.lab("L_g1t1")
        s.lstart(0)
        R1 = s.o.get("rp1", [])
        s.first_q(0, R1, s.o.get("rp1pos", []))
        s.setA(0, 0); s.unit("F_IA0")
        if R1:
            s.att_mixed(1, max(R1) + 2, R1); s.lrun("F_IAM", max(R1) + 2, 15)
        else:
            s.lrun("F_IAM", 1, 15)
        s.unit("F_IAL")
        s.setQ(1, 0); s.unit("F_IQ"); s.unit("F_IQ"); s.call("F_GADR"); s.unit("F_IQ")
        s.cgemm(16, 1); s.call("F_PACKQ"); s.call("F_ASET"); s.B(); s.catt(1)
        s.B(); s.lstart(67); s.setO(3); s.epi_in("F_IO", 3)
        H = s.o.get("help", {})
        s.chk2("F_IO", "F_IO", (1, 0)); s.lrun_x("F_IO", 8, 14, {H["o8"]: lambda: s.touch_w("o8")} if "o8" in H else {})
        s.chk2("F_IO", "F_IO", (2, 0)); s.lrun("F_IO", 16, 24)
        if "tail" in H: s.touch_w("tail")
        s.ldrain()
        s.need_block((3, 0)); s.call("F_FPRE"); s.W(0); s.vq = []; s.call("F_FCHK"); s.B()
        s.setO(0); s.I("F_IT"); s.I("F_IT"); s.WB(s.nu - 2); s.I("F_IT")
        a.lab("L_tail_loader")
        tl_state = (list(s.vq), s.nu)
        s.lrun("F_IT", 3, 6)
        s.chk2("F_IT", "F_IT", (3, 1)); s.lrun("F_IT", 8, PH + 1)
        s.chk2("F_IT", "F_IT", "partner"); s.lrun("F_IT", PH + 3, 16)
        s.ldrain()
        a("s_branch L_finish")
        a.lab("L_g1t0")
        s.init_flags(); s.call("F_GADR"); s.B()
        s.cgemm(16, 16); s.call("F_PACKQ"); s.call("F_ASET"); s.B(); s.catt(0)
        s.B(); s.lstart(35); s.setQ(1, 3); s.epi_in("F_IQ", 1)
        def h1(): s.touch_own_o(0); s.touch_w("o16")
        s.lrun_x("F_IQ", 6, 16, {H["o16"]: h1} if "o16" in H else {})
        s.setA(1, 0); s.unit("F_IA0"); s.unit("F_IAM"); s.unit("F_IAM"); s.att_loader_first(3, 14)
        s.chk2("F_IAM", "F_IAL", (0, 0))
        s.setO(0); s.unit("F_IO"); s.unit("F_IO"); s.call("F_GADR"); s.unit("F_IO")
        s.cgemm(24, 1)
        a.lab("L_tail_compute")
        s.pstore(0, 12)
        s.call("F_TADR")
        a(f"s_cmp_eq_u32 {sG}, 1\ns_cbranch_scc1 L_tc2\ns_barrier")
        a.lab("L_tc2")
        s.B()
        a(f"s_mov_b32 {sCN}, 16\ns_mov_b32 {sSTOP}, 4\ns_mov_b32 {sSTOP2}, {PH}\ns_mov_b32 {sSIG}, 7")
        s.prio(False)
        s.call("F_TAIL", LR2)
        vP = vACC + 48
        a("s_waitcnt vmcnt(0)")
        for r in range(0, 48, 2): a(f"v_pk_add_f32 {vr(vACC+r, 2)}, {vr(vACC+r, 2)}, {vr(vP+r, 2)}")
        dst = lambda mt, pr: vS + (mt * 2 + pr) * 4
        a(f"""v_and_b32 v{vT}, 15, v0
        v_lshlrev_b32 v{vT}, 12, v{vT}
        v_lshrrev_b32 v{vT+2}, 5, v0
        v_bfe_u32 v{vT+3}, v0, 4, 1
        v_lshl_or_b32 v{vT+2}, v{vT+3}, 1, v{vT+2}
        v_lshl_add_u32 v{vT}, v{vT+2}, 4, v{vT}
        s_mul_i32 {sT0}, {sMB}, 192
        s_mul_i32 {sT1}, {sW}, 48
        s_add_u32 {sT0}, {sT0}, {sT1}
        s_lshl_b32 {sT0}, {sT0}, 12
        s_lshl_b32 {sT1}, {sP}, 11
        s_add_u32 {sT0}, {sT0}, {sT1}
        s_add_u32 {sT0}, {sT0}, {sCOL}""")
        for mt in range(3):
            s.pack_mt(mt, 2, None, dst)
            for pr in range(2):
                a(f"buffer_store_dwordx4 {vr(dst(mt, pr))}, v{vT}, {srd(SOUT)}, {sT0} offen offset:{pr*64}")
            if mt < 2: a(f"s_add_u32 {sT0}, {sT0}, 65536")
        a("s_branch L_finish")
        QH = 2 * SLOT + 32768
        a.lab("L_g2t0")
        s.init_flags(); s.call("F_GADR"); s.B()
        s.cgemm(16, 16); s.call("F_PACKQ"); s.call("F_GADR"); s.B()
        s.cgemm(16, 16)
        a(f"s_mul_i32 {sT0}, {sW}, 11264\ns_add_u32 {sT0}, {sT0}, {QH}\nv_add_u32 v{vT}, {sT0}, v{vLO}")
        s.B()
        for i in range(12): a(f"ds_write_b128 v{vT}, {vr(vQ + 4*i)} offset:{i*1024}")
        s.call("F_ASET")
        a("s_waitcnt lgkmcnt(0)")
        s.call("F_PACKQ"); s.B(); s.catt(0)
        for i in range(3): s.call(f"F_EPI{i}")
        s.call("F_GADR"); s.B()
        s.cgemm(16, s.o.get("h2", 3), 1)
        s.B(); s.lstart(67); s.setA(1, 3); s.lrun("F_IAM", 3, 14)
        s.chk2("F_IAM", "F_IAL", (2, 0))
        s.setO(16); s.unit("F_IO"); s.unit("F_IO"); s.call("F_GADR"); s.unit("F_IO")
        s.cgemm(8, 1, 0, "F_GEMMC")
        a("s_branch L_tail_compute")
        a.lab("L_g2t1")
        R2 = s.o.get("rp2", [1, 3, 5, 7, 9, 11])
        s.lstart(0)
        s.warm()
        s.first_q(1, R2, s.o.get("rp2pos", [5, 7, 9, 11, 13, 14]))
        s.setQ(0, 0); s.unit("F_IQ"); s.unit("F_IQ"); s.att_loader_first(2, 16, "F_IQ")
        AU = lambda u: s.AU(u, R2)
        s.setA(0, 0); s.unit("F_IA0"); AU(1); s.WB(); AU(2)
        a(f"s_mul_i32 {sT0}, {sW}, 11264\ns_add_u32 {sT0}, {sT0}, {QH}\nv_add_u32 v{vT}, {sT0}, v{vLO}")
        s.B(); s.WB()
        for i in range(12): a(f"ds_read_b128 {vr(vQ + 4*i)}, v{vT} offset:{i*1024}")
        a("s_waitcnt lgkmcnt(0)")
        s.WB(s.nu - 2); AU(3)
        if R2 and min(R2) >= 8:
            c = min(R2)
            s.lrun("F_IAM", 4, c - 2); s.chk2("F_IAM", "F_IAM", (0, 0))
            for u in range(c, 16): s.AU(u, R2); s.WB()
            s.setO(0); s.AU(16, [], "F_IO"); s.WB(); s.AU(17, [], "F_IO"); s.WB(); s.lrun("F_IO", 2, 6)
        else:
            last = max(R2 + [3]) + 2
            s.att_mixed(4, last, R2); s.lrun("F_IAM", last, 14)
            s.chk2("F_IAM", "F_IAL", (0, 0))
            s.setO(0); s.lrun("F_IO", 0, 6)
        s.chk2("F_IO", "F_IO", (1, 0)); s.lrun("F_IO", 8, 16)
        s.setA(1, 0); s.unit("F_IA0"); s.unit("F_IAM"); s.call("F_ASET"); s.unit("F_IAM")
        s.catt(1)
        s.B(); s.lstart(83); s.setO(19); s.epi_in("F_IO", 3)
        s.chk2("F_IO", "F_IO", (3, 0))
        s.setO(0); s.unit("F_IT"); s.unit("F_IT"); s.unit("F_IT")
        assert (s.vq, s.nu) == tl_state, (s.vq, s.nu, tl_state)
        a("s_branch L_tail_loader")

    def first_q(s, sel, R, pos):
        a = s.a
        s.setQ(sel, 0, first=True)
        sw = s.o.get("sw")
        s.I("F_IQ"); s.I("F_IQ")
        assert len(R) == len(pos)
        if R: s.preload_set()
        def rest(nxt):
            for u in range(nxt, max(pos + [0]) + 1):
                s.I("F_IQ")
                for k in range(len(R)):
                    if pos[k] == u:
                        s.room(8)
                        s.preload(k, R[k])
                s.WB(); nxt = u + 1
            s.lrun("F_IQ", nxt, 16)
        if not sw:
            assert min(pos + [99]) >= 3
            s.WB(0); s.I("F_IQ"); rest(3)
            return
        LW = a.new("L_sw"); LD = a.new("L_swd")
        a(f"""s_lshr_b32 {sT0}, {sWG}, 3
        v_lshrrev_b32 v{vT+1}, 5, v0
        s_and_b32 {sT2}, {sW}, 1
        s_cmp_ge_u32 {sW}, 2
        s_cbranch_scc1 {LW}
        s_and_b32 {sT1}, {sMB}, 4
        s_mul_i32 {sT1}, {sT1}, 192
        s_mul_i32 {sT0}, {sT0}, 24
        s_add_u32 {sT0}, {sT0}, {sT1}
        s_lshl_b32 {sCNT}, {sT0}, 11
        s_lshl_b32 {sT2}, {sT2}, 8
        s_add_u32 {sCNT}, {sCNT}, {sT2}
        v_and_b32 v{vT}, 31, v0
        v_min_u32 v{vT}, 23, v{vT}
        v_lshlrev_b32 v{vT}, 11, v{vT}
        v_lshl_add_u32 v{vT+1}, v{vT+1}, 7, v{vT}
        s_branch {LD}""")
        a.lab(LW)
        a(f"""s_lshl_b32 {sCNT}, {sT0}, 14
        s_lshl_b32 {sT2}, {sT2}, 20
        s_add_u32 {sCNT}, {sCNT}, {sT2}
        s_xor_b32 {sT1}, {sHH4}, {sPX}
        s_lshl_b32 {sT1}, {sT1}, 8
        v_lshlrev_b32 v{vT+1}, 19, v{vT+1}
        v_bfe_u32 v{vT}, v0, 4, 1
        v_lshl_add_u32 v{vT+1}, v{vT}, 13, v{vT+1}
        v_bfe_u32 v{vT}, v0, 3, 1
        v_mul_u32_u24 v{vT}, {24*256}, v{vT}
        v_xor_b32 v{vT}, {sT1}, v{vT}
        v_add_u32 v{vT+1}, v{vT+1}, v{vT}
        v_and_b32 v{vT}, 7, v0
        v_lshl_add_u32 v{vT+1}, v{vT}, 7, v{vT+1}""")
        a.lab(LD)
        def T(k0): a(f"s_mov_b32 {sBIT}, {k0}"); s.call("F_TOUCH"); s.extra(1)
        nxt = 2
        sched = {int(k): v for k, v in sw.items()}
        def iss():
            nonlocal nxt
            if nxt in sched: T(sched[nxt])
            s.I("F_IQ"); nxt += 1
        if 2 in sched: T(sched.pop(2))
        s.WB(0); iss(); iss(); s.WB()
        while nxt <= max(list(sched) + [0]): iss(); s.WB()
        assert min(pos + [99]) >= nxt
        rest(nxt)

    def warm(s):
        if not s.o.get("warm"): return
        a = s.a
        L3 = a.new("L_w3"); LD = a.new("L_wd")
        a(f"""s_lshr_b32 {sT0}, {sWG}, 4
        s_cmp_eq_u32 {sW}, 3
        s_cbranch_scc1 {L3}
        s_and_b32 {sT1}, {sMB}, 4
        s_mul_i32 {sT1}, {sT1}, 192
        s_mul_i32 {sT0}, {sT0}, 48
        s_add_u32 {sT0}, {sT0}, {sT1}
        s_lshl_b32 {sT1}, {sW}, 4
        s_add_u32 {sT0}, {sT0}, {sT1}
        s_lshl_b32 {sT0}, {sT0}, 11
        v_and_b32 v{vT}, 15, v0
        v_lshlrev_b32 v{vT}, 11, v{vT}
        v_lshrrev_b32 v{vT+1}, 4, v0
        v_lshl_add_u32 v{vT}, v{vT+1}, 7, v{vT}""")
        for k in range(4): a(f"buffer_load_dword v{vM+k}, v{vT}, {srd(SX)}, {sT0} offen offset:{k*512}")
        a(f"s_branch {LD}")
        a.lab(L3)
        a(f"""s_lshl_b32 {sT0}, {sT0}, 15
        s_xor_b32 {sT1}, {sHH4}, {sPX}
        s_lshl_b32 {sT1}, {sT1}, 8
        s_add_u32 {sT0}, {sT0}, {sT1}
        v_and_b32 v{vT}, 7, v0
        v_lshlrev_b32 v{vT}, 7, v{vT}
        v_bfe_u32 v{vT+1}, v0, 3, 2
        v_lshl_add_u32 v{vT}, v{vT+1}, 13, v{vT}
        v_lshrrev_b32 v{vT+1}, 5, v0
        v_lshl_add_u32 v{vT}, v{vT+1}, 19, v{vT}
        s_xor_b32 {sT1}, {sT0}, {24*256}""")
        for r in (sT0, sT1):
            for k in range(8):
                a(f"buffer_load_dword v{vM + k % 4}, v{vT}, {srd(SWQ)}, {r} offen")
                if k < 7: a(f"s_add_u32 {r}, {r}, {2 << 19}")
        a.lab(LD)

    def build(s):
        K = NAME + "_kernel"; a = s.a
        s.setup(K)
        s.programs()
        s.loader_funcs()
        s.gemm_addr_func("F_GADR", False); s.gemm_addr_func("F_TADR", True)
        def hk():
            X = a.new("L_hk"); Y = a.new("L_hy")
            a(f"s_waitcnt vmcnt(10)\ns_cmp_eq_u32 {sCI}, 1\ns_cbranch_scc1 {Y}\ns_waitcnt vmcnt(0)")
            a.lab(Y)
            a("s_barrier")
            a(f"s_cmp_eq_u32 {sSIG}, 0\ns_cbranch_scc1 {X}"); s.call("F_SIG"); a.lab(X)
        s.gemm_func("F_GEMM", False, hk)
        s.misc_funcs()
        s.att_func()
        def hk2():
            X = a.new("L_hk"); Y = a.new("L_hy")
            a(f"s_cmp_eq_u32 {sSIG}, 0\ns_cbranch_scc1 {X}")
            a("s_waitcnt vmcnt(0)\ns_barrier"); s.call("F_SIG"); a(f"s_mov_b32 {sSIG}, 0\ns_branch L_hk2end")
            a.lab(X)
            a("s_barrier")
            a(f"""s_xor_b32 {sT0}, {sWG}, 2
            s_mul_i32 {sT0}, {sT0}, 49152
            s_mul_i32 {sT1}, {sW}, 12288
            s_add_u32 {sT0}, {sT0}, {sT1}
            s_add_u32 {sT0}, {sT0}, {WS_P}
            v_lshlrev_b32 v{vT}, 4, v0""")
            for i in range(12):
                if i % 4 == 0 and i: a(f"s_add_u32 {sT0}, {sT0}, 4096")
                a(f"buffer_load_dwordx4 {vr(vACC + 48 + 4*i)}, v{vT}, {srd(SWS)}, {sT0} offen offset:{(i % 4)*1024} sc1")
            a.lab("L_hk2end")
        s.gemm_func("F_TAIL", True, hk2)
        s.stamp_funcs()
        s.finish()
        l = a.l
        if s.o.get("nocomp"): l = [x for x in l if not re.match(r"\s+(v_mfma|ds_read|v_exp|v_cvt_pk|v_max3|s_cbranch_vccnz)", x)]
        if s.o.get("noload"): l = [x for x in l if not (re.match(r"\s+buffer_load.* lds", x) or "s_cbranch_vccnz" in x)]
        if s.o.get("nostore"): l = [x for x in l if not re.match(r"\s+buffer_store_dwordx4", x)]
        out = ["; @launch grid=(256,1,1) block=(512,1,1) lds=163840", '.amdgcn_target "amdgcn-amd-amdhsa--gfx950"', ".text"] + l
        out += ['.section .rodata,"a"', ".p2align 6", f""".amdhsa_kernel {K}
  .amdhsa_next_free_vgpr 256
  .amdhsa_next_free_sgpr 102
  .amdhsa_accum_offset 256
  .amdhsa_group_segment_fixed_size 0
  .amdhsa_kernarg_size 104
  .amdhsa_user_sgpr_count 2
  .amdhsa_user_sgpr_kernarg_segment_ptr 1
  .amdhsa_system_sgpr_workgroup_id_x 1
.end_amdhsa_kernel"""]
        return "\n".join(out) + "\n"

if __name__ == "__main__":
    import argparse, json
    ap = argparse.ArgumentParser()
    ap.add_argument("-o", default="k.s"); ap.add_argument("--stamps", action="store_true"); ap.add_argument("--opts", default="{}")
    A = ap.parse_args()
    open(A.o, "w").write(Gen(A.stamps, json.loads(A.opts)).build())
```
